```python
import torch

def _softmax(x, axis=-1):
    return torch.softmax(x, dim=axis)
def _gelu(x):
    return torch.nn.functional.gelu(x, approximate="tanh")
def _silu(x):
    return torch.nn.functional.silu(x)
def _sigmoid(x):
    return torch.sigmoid(x)
def _layernorm(x, axis=-1, eps=1e-5):
    m = x.mean(dim=axis, keepdim=True)
    v = x.var(dim=axis, keepdim=True, unbiased=False)
    return (x - m) / torch.sqrt(v + eps)
def _scatter_add(tgt, idx, src, axis=0):
    return tgt.clone().index_add_(axis, idx, src)
def _segment_sum(src, seg, n):
    out = torch.zeros((n,) + src.shape[1:], dtype=src.dtype)
    return out.index_add_(0, seg, src)
def _pad(x, pw):
    flat = tuple(v for pair in reversed(pw) for v in pair)
    return torch.nn.functional.pad(x, flat)

kernel_name = 'sequential_preLN__sliding_block_cached__moe_arch_mod__decode'

def setup_inputs():

    _w = (lambda a: (lambda t: t.to(torch.bfloat16) if t.is_floating_point() else t)(torch.as_tensor(a)))
    def _A_setup():
        B, Sq, D = 2, 1, 512
        Hq, Hkv, Sk, Dh = 32, 32, 16384, 128
        assert Hq % Hkv == 0, (Hq, Hkv)
        return {
            "x": _w((lambda *s: torch.randn(*s, dtype=torch.bfloat16) * 0.05)(B, Sq, D)),
            "k_cache": _w((lambda *s: torch.randn(*s, dtype=torch.bfloat16) * 3.2)(B, Hkv, Sk, Dh)),
            "v_cache": _w((lambda *s: torch.randn(*s, dtype=torch.bfloat16) * 0.4)(B, Hkv, Sk, Dh)),
            "wq": _w((lambda *s: torch.randn(*s, dtype=torch.bfloat16) * 3.2)(D, Hq * Dh) * (D ** -0.5)),
            "wo": _w((lambda *s: torch.randn(*s, dtype=torch.bfloat16) * 0.4)(Hq * Dh, D) * ((Hq * Dh) ** -0.5)),
        }
    _A_in = _A_setup()

    def _B_setup():
        B, S, D, F, C = 2, 1, 512, 1376, 1
        return {
            "x": _w((lambda *s: torch.randn(*s, dtype=torch.bfloat16) * 0.05)(B, S, D)),
            "w_r": _w((lambda *s: torch.randn(*s, dtype=torch.bfloat16) * 3.2)(D)),
            "w_gate": _w((lambda *s: torch.randn(*s, dtype=torch.bfloat16) * 0.1)(D, F)),
            "w_up": _w((lambda *s: torch.randn(*s, dtype=torch.bfloat16) * 0.1)(D, F)),
            "w_down": _w((lambda *s: torch.randn(*s, dtype=torch.bfloat16) * 0.1)(F, D)),
        }
    _B_in = _B_setup()

    return {
        "A_x": _A_in["x"],
        "A_k_cache": _A_in["k_cache"],
        "A_v_cache": _A_in["v_cache"],
        "A_wq": _A_in["wq"],
        "A_wo": _A_in["wo"],
        "B_x": _B_in["x"],
        "B_w_r": _B_in["w_r"],
        "B_w_gate": _B_in["w_gate"],
        "B_w_up": _B_in["w_up"],
        "B_w_down": _B_in["w_down"],
    }

def reference(A_x, A_k_cache, A_v_cache, A_wq, A_wo, B_x, B_w_r, B_w_gate, B_w_up, B_w_down):
    def _A_ref(x, k_cache, v_cache, wq, wo):
        B, Sq, D = x.shape
        Hq, Dh = 32, 128
        Hkv, Sk = k_cache.shape[1], k_cache.shape[2]
        W = min(4096, max(256, Sk // 4))
        rep = Hq // Hkv
        q = (lambda x, *d: x.permute(*d))((x @ wq).reshape(B, Sq, Hq, Dh), 0, 2, 1, 3)
        k = (lambda x, n, axis: torch.repeat_interleave(x, n, dim=axis))(k_cache[:, :, Sk - W:, :], rep, axis=1)
        v = (lambda x, n, axis: torch.repeat_interleave(x, n, dim=axis))(v_cache[:, :, Sk - W:, :], rep, axis=1)
        scores = torch.einsum("bhqd,bhkd->bhqk", q, k) * (Dh ** -0.5)
        p = _softmax(scores, axis=-1)
        o = torch.einsum("bhqk,bhkd->bhqd", p, v)
        return (lambda x, *d: x.permute(*d))(o, 0, 2, 1, 3).reshape(B, Sq, Hq * Dh) @ wo

    def _B_ref(x, w_r, w_gate, w_up, w_down):
        B, S, D = x.shape
        C = 1
        r = x @ w_r
        idx = torch.argsort(-r, axis=-1)[:, :C]
        idx_e = (lambda x, n, axis: torch.repeat_interleave(x, n, dim=axis))(idx.reshape(B, C, 1), D, axis=2)
        x_sel = (lambda x, i, axis: torch.take_along_dim(x, i, dim=axis))(x, idx_e, axis=1)
        g = _silu(x_sel @ w_gate)
        u = x_sel @ w_up
        y = (g * u) @ w_down
        r_sel = _sigmoid((lambda x, i, axis: torch.take_along_dim(x, i, dim=axis))(r, idx, axis=1))
        y = y * r_sel.reshape(B, C, 1)
        b_off = (torch.arange(B) * S).reshape(B, 1)
        flat_idx = (idx + b_off).reshape(B * C)
        zero = (x * 0.0).reshape(B * S, D)
        upd = _scatter_add(zero, flat_idx, y.reshape(B * C, D), axis=0)
        return x + upd.reshape(B, S, D)

    x = A_x
    h = x + _A_ref(_layernorm(x, axis=-1), A_k_cache, A_v_cache, A_wq, A_wo)
    h2 = h + _B_ref(_layernorm(h, axis=-1), B_w_r, B_w_gate, B_w_up, B_w_down)
    return h2
```

```python
import re

def _regs(tok):
    tok = tok.strip()
    neg = tok.lstrip('-')
    m = re.fullmatch(r'abs\((.*)\)', neg)
    if m: neg = m.group(1)
    neg = neg.strip('|')
    m = re.fullmatch(r'([vsa])(\d+)', neg)
    if m: return {(m.group(1), int(m.group(2)))}
    m = re.fullmatch(r'([vsa])\[(\d+):(\d+)\]', neg)
    if m: return {(m.group(1), i) for i in range(int(m.group(2)), int(m.group(3)) + 1)}
    if neg in ('vcc', 'vcc_lo', 'vcc_hi'): return {('x', 'vcc')}
    if neg in ('exec', 'exec_lo', 'exec_hi'): return {('x', 'exec')}
    if neg == 'm0': return {('x', 'm0')}
    return set()

TRANS = ('v_exp_f32', 'v_log_f32', 'v_rcp_f32', 'v_rsq_f32', 'v_sqrt_f32', 'v_sin_f32', 'v_cos_f32')

class Ins:
    def __init__(self, text):
        self.text = text
        t = text.split(';')[0].strip()
        parts = t.split(None, 1)
        self.op = parts[0]
        rest = parts[1] if len(parts) > 1 else ''
        ops = []
        depth = 0; cur = ''
        for ch in rest:
            if ch in '[(': depth += 1
            if ch in '])': depth -= 1
            if ch == ',' and depth == 0:
                ops.append(cur.strip()); cur = ''
            else: cur += ch
        last = cur.strip()
        self.mods = ''
        if last:
            sp = last.split(None, 1)
            ops.append(sp[0])
            if len(sp) > 1: self.mods = sp[1]
        self.ops = ops
        op = self.op
        self.is_mfma = op.startswith('v_mfma')
        self.is_valu = op.startswith('v_') and not self.is_mfma
        self.is_dot = op.startswith('v_dot')
        self.is_trans = any(op.startswith(x) for x in TRANS)
        self.is_dpp = '_dpp' in op
        self.is_perml = op.startswith('v_permlane')
        self.is_rdl = op.startswith('v_readlane') or op.startswith('v_readfirstlane')
        self.is_vmem = op.startswith('buffer_') or op.startswith('global_')
        self.is_ds = op.startswith('ds_')
        self.is_salu = op.startswith('s_')
        self.is_store = self.is_vmem and ('store' in op or 'atomic' in op)
        self.wide_store = self.is_vmem and 'store' in op and ('x4' in op or 'x3' in op)
        self.lds_dma = self.is_vmem and re.search(r'\blds\b', self.mods) is not None
        R = set(); W = set()
        o = [_regs(x) for x in ops]
        self.srcC = set(); self.srcAB = set(); self.store_data = set()
        if self.is_mfma:
            W |= o[0]; R |= o[1] | o[2] | o[3]; self.srcC = o[3]; self.srcAB = o[1] | o[2]
        elif self.is_valu:
            if self.is_perml:
                W |= o[0] | o[1]; R |= o[0] | o[1]
            elif op.startswith('v_cmp'):
                W |= o[0]
                for x in o[1:]: R |= x
            elif op.startswith(('v_add_co', 'v_sub_co', 'v_addc_co', 'v_subb_co', 'v_subrev_co')):
                W |= o[0] | o[1]
                for x in o[2:]: R |= x
            else:
                W |= o[0]
                for x in o[1:]: R |= x
                if op.startswith(('v_fmac', 'v_dot2c', 'v_writelane')) or self.is_dpp: R |= o[0]
                if self.is_dot and len(o) == 4: self.srcC = o[3]; self.srcAB = o[1] | o[2]
                if op.startswith('v_dot2c'): self.srcC = o[0]; self.srcAB = o[1] | o[2]
        elif self.is_vmem:
            if self.lds_dma:
                for x in o: R |= x
                R.add(('x', 'm0'))
            elif op.startswith('buffer_'):
                if self.is_store:
                    for x in o: R |= x
                    self.store_data = o[0]
                    if 'atomic' in op and 'sc0' in self.mods: W |= o[0]
                else:
                    W |= o[0]
                    for x in o[1:]: R |= x
            else:
                if 'store' in op:
                    for x in o: R |= x
                    self.store_data = o[1]
                elif 'atomic' in op:
                    if 'sc0' in self.mods:
                        W |= o[0]
                        for x in o[1:]: R |= x
                    else:
                        for x in o: R |= x
                else:
                    W |= o[0]
                    for x in o[1:]: R |= x
        elif self.is_ds:
            if op.startswith(('ds_read', 'ds_bpermute', 'ds_permute', 'ds_swizzle')):
                W |= o[0]
                for x in o[1:]: R |= x
            else:
                for x in o: R |= x
        elif self.is_salu:
            if op.startswith(('s_cmp', 's_cbranch', 's_branch', 's_waitcnt', 's_nop', 's_barrier', 's_sleep', 's_endpgm', 's_setprio', 's_bitcmp')):
                for x in o: R |= x
            else:
                if o: W |= o[0]
                for x in o[1:]: R |= x
                if 'saveexec' in op: W.add(('x', 'exec'))
        self.R = R; self.W = W
        self.passes = 0
        if self.is_mfma:
            if '16x16x32' in op or '16x16x16' in op: self.passes = 4
            elif '32x32x16' in op or '32x32x8' in op: self.passes = 8
            elif '4x4x4' in op: self.passes = 2
            else: raise ValueError(op)
        self.states = 1
        if op == 's_nop': self.states = int(ops[0], 0) + 1

def need(p, c):
    n = 0
    pv = {r for r in p.W if r[0] in 'va'}
    ps = {r for r in p.W if r[0] == 's' or r == ('x', 'vcc')}
    if p.is_valu:
        if c.is_dpp and pv & c.R: n = max(n, 2)
        if c.is_perml and pv & c.R: n = max(n, 2)
        if c.is_rdl and pv & c.R: n = max(n, 1)
        if c.is_valu and ps & c.R: n = max(n, 4 if c.is_rdl or c.op.startswith('v_writelane') else 2)
        if c.is_valu and ('x', 'vcc') in ps and c.op.startswith(('v_cndmask', 'v_addc', 'v_subb', 'v_div_fmas')): n = max(n, 4 if 'fmas' in c.op else 2)
        if c.is_vmem and ps & c.R: n = max(n, 5)
        if p.is_trans and c.is_valu and not c.is_trans and pv & c.R: n = max(n, 1)
        if p.is_trans and (c.is_mfma or c.is_vmem or c.is_ds) and pv & c.R: n = max(n, 1)
        if c.is_mfma and pv & c.R: n = max(n, 3 if p.is_dot else 2)
        if p.is_dot:
            if c.is_dot and c.op == p.op:
                if pv & c.srcAB: n = max(n, 3)
                elif pv & c.W and not (pv & c.srcC): n = max(n, 3)
            elif pv & (c.R | c.W): n = max(n, 3)
        if 'sdwa' in p.op and c.is_valu and pv & (c.R | c.W): n = max(n, 1)
        if ('x', 'exec') in p.W:
            if c.is_dpp: n = max(n, 5)
            if c.is_mfma or c.is_rdl or c.is_perml: n = max(n, 4)
    if p.is_mfma:
        idx = {2: 0, 4: 1, 8: 2, 16: 3}[p.passes]
        if c.is_mfma:
            if pv & c.srcAB: n = max(n, [5, 8, 12, 20][idx])
            if pv & c.srcC:
                if c.srcC == pv and c.passes == p.passes: n = max(n, [2, 0, 0, 0][idx])
                else: n = max(n, [4, 6, 10, 18][idx])
            elif pv & c.W: n = max(n, [4, 6, 10, 18][idx])
        elif (c.is_valu or c.is_vmem or c.is_ds) and pv & (c.R | c.W): n = max(n, [5, 8, 12, 20][idx])
        if c.is_valu and p.srcC & c.W: n = max(n, [1, 3, 7, 15][idx])
    if p.wide_store and p.store_data & c.W: n = max(n, 2)
    if p.is_salu and ('x', 'm0') in p.W and c.lds_dma: n = max(n, 1)
    return n

class Asm:
    def __init__(self):
        self.lines = []
        self.hist = []
        self.vmq = []
        self.nnop = 0
    def raw(self, s): self.lines.append(s)
    def c(self, s): self.lines.append('    ; ' + s)
    def I(self, text, tag=None, count=True):
        ins = Ins(text)
        dist = 0; req = 0
        for p in reversed(self.hist):
            r = need(p, ins) - dist
            req = max(req, r)
            dist += p.states
            if dist >= 24: break
        while req > 0:
            k = min(req, 16)
            nop = Ins(f's_nop {k-1}')
            self.lines.append(f'    s_nop {k-1}'); self.hist.append(nop); req -= k; self.nnop += 1
        self.lines.append('    ' + text)
        self.hist.append(ins)
        if len(self.hist) > 64: self.hist = self.hist[-40:]
        if ins.is_vmem and count: self.vmq.append(tag if tag is not None else object())
        return ins
    def label(self, name, pad=0):
        self.lines.append(f'{name}:')
        if pad: self.I(f's_nop {pad-1}')
    def fence(self, n=20):
        pend = 0; dist = 0
        for p in reversed(self.hist):
            w = 0
            if p.is_mfma: w = {2: 5, 4: 8, 8: 12, 16: 20}[p.passes]
            elif p.is_valu: w = 5
            elif p.wide_store: w = 2
            elif p.is_salu and ('x', 'm0') in p.W: w = 1
            pend = max(pend, w - dist); dist += p.states
            if dist >= 24: break
        if pend > 0: self.I(f's_nop {pend-1}')
    def wait_vm(self, tag, extra=''):
        if tag not in self.vmq:
            return False
        i = self.vmq.index(tag)
        n = len(self.vmq) - 1 - i
        assert n <= 63, n
        self.I(f's_waitcnt vmcnt({n})' + extra)
        self.vmq = self.vmq[i + 1:]
        return True
    def wait_vm_all(self):
        self.I('s_waitcnt vmcnt(0)'); self.vmq = []
    def lg0(self): self.I('s_waitcnt lgkmcnt(0)')
    def text(self): return '\n'.join(self.lines) + '\n'
```

```python
import sys, struct
from asmlib import Asm
NAME = "sequential_preLN__sliding_block_cached__moe_arch_mod__decode"
HEADER = open("cdna_kernels/" + NAME + ".s.ref").read().split("; Override launch")[0]

def f32(x): return "0x%08x" % struct.unpack("<I", struct.pack("<f", x))[0]
LOG2E = 1.4426950408889634

ZIN = 0x00000
YIN = 0x80000
HIN = 0xB0000
MLA = 0xB8000
QS, OS, GS, ZERO, LS, MXS = 0x000, 0x200, 0x400, 0x600, 0x700, 0x740
LN2, HS, GU, FW = 0x1000, 0x1800, 0x2000, 0x4000
LDS_BYTES = FW + 8 * 12288
NFFN = 43

def gen(NS=24, D=12, stamps=False, nt=True, LEAD=4, wo_at=20, ffn_at=36, perm_at=50, dbg=None):
    a = Asm(); I = a.I
    NT = " nt" if nt else ""
    a.raw(HEADER.rstrip("\n"))
    a.raw(f"; @launch grid=(256,1,1) block=(512,1,1) lds={LDS_BYTES}")
    a.raw('.amdgcn_target "amdgcn-amd-amdhsa--gfx950"')
    a.raw(".text"); a.raw(f".globl {NAME}_kernel"); a.raw(".p2align 8")
    a.raw(f".type {NAME}_kernel,@function"); a.raw(f"{NAME}_kernel:")
    RING, X0, X1, T = 48, 144, 176, 208
    XF, XA = 240, 244
    sH, sB, sSP, sW, sOFF, sCNT = "s72", "s73", "s74", "s75", "s76", "s77"
    sL2E, sSELLO, sSELHI = "s30", "s31", "s3"
    def stamp(i):
        if stamps: I(f"s_memrealtime s[{80+2*i}:{81+2*i}]")
    def quad(r): return f"v[{r}:{r+3}]"

    I("s_cmp_ge_u32 s2, 256"); I("s_cbranch_scc1 L_end")
    I("s_load_dwordx16 s[4:19], s[0:1], 0")
    I("s_load_dwordx8 s[20:27], s[0:1], 64")
    I("s_load_dwordx2 s[28:29], s[0:1], 96")
    if stamps:
        for i in range(82, 100): I(f"s_mov_b32 s{i}, 0")
    stamp(0)
    I("v_and_b32 v1, 63, v0")
    I("v_lshrrev_b32 v40, 6, v0")
    I("v_lshlrev_b32 v2, 4, v0")
    I(f"v_readfirstlane_b32 {sW}, v40")
    I(f"s_and_b32 {sH}, s2, 31")
    I(f"s_bfe_u32 {sB}, s2, 0x10005")
    I(f"s_lshr_b32 {sSP}, s2, 6")
    I("v_lshrrev_b32 v41, 4, v1")
    I("v_and_b32 v42, 15, v1")
    I(f"s_lshl_b32 s100, {sB}, 10")
    I("v_lshlrev_b32 v43, 4, v1"); I("v_add_u32 v43, s100, v43")
    I("v_lshlrev_b32 v44, 7, v40"); I("v_lshl_add_u32 v44, v41, 4, v44"); I("v_add_u32 v44, s100, v44")
    I("v_lshlrev_b32 v3, 19, v40"); I("v_lshl_add_u32 v3, v41, 16, v3"); I("v_lshl_add_u32 v3, v42, 4, v3")
    I(f"s_lshl_b32 s100, {sB}, 27"); I(f"s_lshl_b32 s101, {sH}, 22"); I("s_add_u32 s100, s100, s101")
    I(f"s_lshl_b32 s101, {sSP}, 18"); I("s_add_u32 s100, s100, s101"); I("s_add_u32 s100, s100, 0x300000")
    I("s_mov_b32 s34, 0x40000"); I("s_mov_b32 s35, 0x20000"); I("s_mov_b32 s38, 0x40000"); I("s_mov_b32 s39, 0x20000")
    I(f"s_lshl_b32 s101, {sH}, 8")
    I("s_sub_u32 s42, 0x400000, s101"); I("s_mov_b32 s43, 0x20000")
    a.lg0()
    I(f"global_load_dwordx4 {quad(XF)}, v43, s[4:5]", tag="XF")
    I("s_add_u32 s32, s6, s100"); I("s_addc_u32 s33, s7, 0")
    I(f"global_load_dwordx4 {quad(XA)}, v44, s[4:5]", tag="XA0")
    I("s_add_u32 s36, s8, s100"); I("s_addc_u32 s37, s9, 0")
    I(f"global_load_dwordx4 {quad(XA+4)}, v44, s[4:5] offset:64", tag="XA1")
    I("s_add_u32 s40, s10, s101"); I("s_addc_u32 s41, s11, 0")

    order = [("K", j) for j in range(LEAD)]
    for j in range(32 - LEAD): order += [("K", j + LEAD), ("V", j)]
    order += [("V", j) for j in range(32 - LEAD, 32)]
    assert len(order) == 64
    issued = [0]
    def slot(i): return RING + 4 * (i % NS)
    def issue_kv():
        i = issued[0]; t, j = order[i]
        srd = "s[32:35]" if t == "K" else "s[36:39]"
        if j == 0:
            I(f"buffer_load_dwordx4 {quad(slot(i))}, v2, {srd}, 0 offen{NT}", tag=("kv", i))
        else:
            I(f"s_mov_b32 {sOFF}, {j*8192}")
            I(f"buffer_load_dwordx4 {quad(slot(i))}, v2, {srd}, {sOFF} offen{NT}", tag=("kv", i))
        issued[0] += 1
    def issue_wq(u):
        t, i = u >> 3, u & 7
        r = (X0 if t == 0 else X1) + 4 * i
        off = (t * 32 + i) * 8192
        if off == 0: I(f"buffer_load_dwordx4 {quad(r)}, v3, s[40:43], 0 offen{NT}", tag=("wq", u))
        else:
            I(f"s_mov_b32 {sOFF}, {off}")
            I(f"buffer_load_dwordx4 {quad(r)}, v3, s[40:43], {sOFF} offen{NT}", tag=("wq", u))
    for blk in range(4):
        issue_kv(); issue_kv()
        for u in range(4): issue_wq(blk * 4 + u)
    I("s_mov_b32 s52, s28"); I("s_mov_b32 s53, s29"); I("s_mov_b32 s54, 0x100000"); I("s_mov_b32 s55, 0x20000")
    for r in range(4): I(f"v_mov_b32 v{32+r}, -1")
    I("v_lshlrev_b32 v45, 9, v40"); I("v_lshl_add_u32 v45, v1, 4, v45")
    I("s_lshl_b32 s100, s2, 12")
    I("s_mov_b32 exec_hi, 0")
    I("buffer_store_dwordx4 v[32:35], v45, s[52:55], s100 offen sc1", tag="clr")
    I("s_mov_b32 exec_hi, -1")
    while issued[0] < NS: issue_kv()
    I("v_lshlrev_b32 v45, 2, v0"); I("v_mov_b32 v46, 0")
    I("ds_write_b32 v45, v46")
    I(f"s_mov_b32 {sL2E}, {f32(LOG2E)}"); I(f"s_mov_b32 {sSELLO}, 0x05040100"); I(f"s_mov_b32 {sSELHI}, 0x07060302")
    I("v_and_b32 v45, 1, v1"); I("v_lshlrev_b32 v45, 4, v45")
    I("v_mov_b32 v46, 0xffff"); I("v_lshlrev_b32 v46, v45, v46")
    I("v_bfe_u32 v45, v1, 1, 2")
    for r in range(4):
        I(f"v_cmp_eq_u32 vcc, {r}, v45")
        I(f"v_cndmask_b32 v{5+r}, 0, v46, vcc")
    I("v_bfe_u32 v45, v1, 3, 1"); I("v_lshlrev_b32 v4, 15, v45"); I("v_lshl_add_u32 v4, v41, 13, v4")
    I("v_lshl_add_u32 v4, v40, 7, v4"); I("v_and_b32 v45, 7, v1"); I("v_lshl_add_u32 v4, v45, 4, v4")
    I(f"s_lshl_b32 s100, {sH}, 17")
    I("s_add_u32 s44, s12, s100"); I("s_addc_u32 s45, s13, 0"); I("s_mov_b32 s46, 0x20000"); I("s_mov_b32 s47, 0x20000")
    I(f"s_min_u32 s70, s2, {NFFN-1}")
    I("s_lshl_b32 s100, s70, 6")
    I("s_add_u32 s56, s18, s100"); I("s_addc_u32 s57, s19, 0")
    I("s_add_u32 s60, s20, s100"); I("s_addc_u32 s61, s21, 0")
    I(f"s_sub_u32 s101, {512*2752}, s100")
    I("s_lshl_b32 s100, s70, 15")
    I("s_add_u32 s64, s22, s100"); I("s_addc_u32 s65, s23, 0")
    I(f"s_cmp_lt_u32 s2, {NFFN}")
    I("s_cselect_b32 s58, s101, 0"); I("s_cselect_b32 s62, s101, 0"); I("s_cselect_b32 s66, 0x8000, 0")
    I("s_mov_b32 s59, 0x20000"); I("s_mov_b32 s63, 0x20000"); I("s_mov_b32 s67, 0x20000")
    I("v_lshrrev_b32 v45, 2, v1"); I("v_lshl_add_u32 v45, v40, 6, v45")
    I("v_mul_u32_u24 v46, 2752, v45"); I("v_and_b32 v45, 3, v1"); I("v_lshl_add_u32 v46, v45, 4, v46")
    I("v_lshrrev_b32 v45, 3, v1"); I("v_lshlrev_b32 v47, 10, v45"); I("v_lshl_add_u32 v47, v40, 7, v47")
    I("v_and_b32 v45, 7, v1"); I("v_lshl_add_u32 v47, v45, 4, v47")
    I(f"s_mul_i32 s71, {sW}, 12288"); I(f"s_add_u32 s71, s71, {FW}")
    a.lg0()
    I("s_barrier")

    def row_allreduce(op, v):
        I(f"{op}_dpp v{v}, v{v}, v{v} quad_perm:[1,0,3,2] row_mask:0xf bank_mask:0xf")
        I(f"{op}_dpp v{v}, v{v}, v{v} quad_perm:[2,3,0,1] row_mask:0xf bank_mask:0xf")
        I(f"{op}_dpp v{v}, v{v}, v{v} row_ror:4 row_mask:0xf bank_mask:0xf")
        I(f"{op}_dpp v{v}, v{v}, v{v} row_ror:8 row_mask:0xf bank_mask:0xf")
    def rows_to_sgpr(op, v, s):
        I(f"{op}_dpp v{v}, v{v}, v{v} row_bcast:15 row_mask:0xa bank_mask:0xf")
        I(f"{op}_dpp v{v}, v{v}, v{v} row_bcast:31 row_mask:0xc bank_mask:0xf")
        I(f"v_readlane_b32 {s}, v{v}, 63")
    def rbf(d, s):
        I(f"v_cvt_pk_bf16_f32 v{d}, v{s}, v{s}"); I(f"v_and_b32 v{d}, 0xffff0000, v{d}")
    def unpack(dst, src, n):
        for k in range(n):
            I(f"v_lshlrev_b32 v{dst+2*k}, 16, v{src+k}"); I(f"v_and_b32 v{dst+2*k+1}, 0xffff0000, v{src+k}")
    def ln_stats_tail(vsum2, vm, vrinv, tmp):
        I(f"v_mul_f32 v{tmp}, {f32(1.0/512)}, v{vsum2}")
        rbf(tmp, tmp)
        I(f"v_add_f32 v{tmp}, {f32(1e-5)}, v{tmp}")
        rbf(tmp, tmp)
        I(f"v_sqrt_f32 v{tmp}, v{tmp}")
        rbf(tmp, tmp)
        I(f"v_rcp_f32 v{vrinv}, v{tmp}")
    def ln_apply(dst, src, n, vm, vrinv, tmp):
        for k in range(n):
            t0, t1 = tmp + 2 * (k & 1), tmp + 2 * (k & 1) + 1
            I(f"v_lshlrev_b32 v{t0}, 16, v{src+k}"); I(f"v_and_b32 v{t1}, 0xffff0000, v{src+k}")
            I(f"v_sub_f32 v{t0}, v{t0}, v{vm}"); I(f"v_sub_f32 v{t1}, v{t1}, v{vm}")
            I(f"v_cvt_pk_bf16_f32 v{t1}, v{t0}, v{t1}")
            I(f"v_lshlrev_b32 v{t0}, 16, v{t1}"); I(f"v_and_b32 v{t1}, 0xffff0000, v{t1}")
            I(f"v_mul_f32 v{t0}, v{t0}, v{vrinv}"); I(f"v_mul_f32 v{t1}, v{t1}, v{vrinv}")
            I(f"v_cvt_pk_bf16_f32 v{dst+k}, v{t0}, v{t1}")
    def perm_block(dst, src, pps=range(4)):
        for pp in pps:
            for c in range(4):
                lo, hi = src + 4 * (2 * pp) + c, src + 4 * (2 * pp + 1) + c
                I(f"v_perm_b32 v{dst + 4*(2*c) + pp}, v{hi}, v{lo}, {sSELLO}")
                I(f"v_perm_b32 v{dst + 4*(2*c+1) + pp}, v{hi}, v{lo}, {sSELHI}")

    a.wait_vm("XF")
    stamp(1)
    unpack(T, XF, 4)
    I(f"v_add_f32 v19, v{T}, v{T+1}"); I(f"v_add_f32 v20, v{T+2}, v{T+3}"); I(f"v_add_f32 v21, v{T+4}, v{T+5}"); I(f"v_add_f32 v22, v{T+6}, v{T+7}")
    I("v_add_f32 v19, v19, v20"); I("v_add_f32 v21, v21, v22"); I("v_add_f32 v19, v19, v21")
    row_allreduce("v_add_f32", 19); rows_to_sgpr("v_add_f32", 19, "s100")
    I(f"v_mov_b32 v20, {f32(1.0/512)}")
    I("v_mul_f32 v20, s100, v20")
    for k in range(8): I(f"v_sub_f32 v{T+k}, v{T+k}, v20")
    I(f"v_mul_f32 v19, v{T}, v{T}"); I(f"v_mul_f32 v21, v{T+1}, v{T+1}")
    for k in range(2, 8): I(f"v_fmac_f32 v{19 if k % 2 == 0 else 21}, v{T+k}, v{T+k}")
    I("v_add_f32 v19, v19, v21")
    row_allreduce("v_add_f32", 19); rows_to_sgpr("v_add_f32", 19, "s100")
    rbf(20, 20)
    I("v_mov_b32 v19, s100")
    ln_stats_tail(19, 20, 21, 22)
    a.wait_vm("XA1")
    ln_apply(XA, XA, 8, 20, 21, 23)
    for t in range(2):
        src = X0 if t == 0 else X1
        for pp in range(4):
            a.wait_vm(("wq", t * 8 + 2 * pp + 1))
            perm_block(T, src, [pp])
        for j in range(8):
            c = "0" if t == 0 else quad(X0 + 4 * j)
            I(f"v_mfma_f32_16x16x32_bf16 {quad(X0+4*j)}, {quad(XA+4*t)}, {quad(T+4*j)}, {c}")
    I(f"v_lshlrev_b32 v45, 5, v42")
    I("s_mov_b64 exec, 0xffff")
    for j in range(8): I(f"ds_add_f32 v45, v{X0+4*j} offset:{QS+4*j}")
    I("s_mov_b64 exec, -1")
    a.wait_vm("clr")
    a.lg0()
    I("s_barrier")
    I(f"ds_read_b128 {quad(T)}, v45 offset:{QS}"); I(f"ds_read_b128 {quad(T+4)}, v45 offset:{QS+16}")
    I(f"s_cmp_lg_u32 {sW}, 0"); I("s_cbranch_scc1 L_noadd")
    I("v_mov_b32 v26, 0"); I("v_mov_b32 v27, 1"); I("s_mov_b64 exec, 1")
    I("global_atomic_add v26, v27, s[26:27] sc1", count=False)
    I("s_mov_b64 exec, -1")
    a.label("L_noadd")
    a.lg0()
    for k in range(4): I(f"v_cvt_pk_bf16_f32 v{9+k}, v{T+2*k}, v{T+2*k+1}")
    stamp(2)
    if dbg == "q":
        I("s_lshl_b32 s100, s2, 13"); I("s_add_u32 s100, s100, 0x1000000"); I("v_add_u32 v45, s100, v2")
        for k in range(4): I(f"v_mov_b32 v{T+k}, v{9+k}")
        I(f"global_store_dwordx4 v45, {quad(T)}, s[28:29]", count=False)

    side = []
    def issue_wo(u):
        t, i = u >> 3, u & 7
        r = (X0 if t == 0 else X1) + 4 * i
        off = (t * 64 + i) * 1024
        if off < 4096: I(f"buffer_load_dwordx4 {quad(r)}, v4, s[44:47], 0 offen offset:{off}{NT}", tag=("wo", u))
        else:
            I(f"s_mov_b32 {sOFF}, {off}")
            I(f"buffer_load_dwordx4 {quad(r)}, v4, s[44:47], {sOFF} offen{NT}", tag=("wo", u))
    def issue_ffn(u):
        m, k = u >> 2, u & 3
        I(f"s_add_u32 m0, s71, {u*1024}")
        srd = ["s[56:59]", "s[60:63]", "s[64:67]"][m]
        off = k * 44032 if m < 2 else k * 8192
        va = "v46" if m < 2 else "v47"
        I(f"s_mov_b32 {sOFF}, {off}")
        I(f"buffer_load_dwordx4 {va}, {srd}, {sOFF} offen{NT} lds", tag=("ffn", u))
    sides = {}
    for u in range(16): sides.setdefault(wo_at + u, []).append(lambda u=u: issue_wo(u))
    for u in range(12): sides.setdefault(ffn_at + u, []).append(lambda u=u: issue_ffn(u))
    def rdy():
        I("v_mov_b32 v26, 0")
        I("global_load_dword v43, v26, s[26:27] sc1", tag="rdy")
    i_k31 = order.index(("K", 31))
    sides.setdefault(i_k31 - 1, []).append(rdy)
    pending_side = [k for k in sorted(sides) if k < NS]
    for k in pending_side:
        for fn in sides.pop(k): fn()
    def issue_more(consumed):
        while issued[0] < 64 and issued[0] < consumed + D and issued[0] - NS < consumed:
            k = issued[0]
            issue_kv()
            for fn in sides.pop(k, []): fn()
    BC = [0, 8, 4, 12]
    perm_steps = [(T, X0, pp, 0) for pp in range(4)] + [(X0, X1, pp, 1) for pp in range(4)]
    def build_A(j):
        c, e = j >> 2, j & 3
        ab = 32 + 4 * (j & 1)
        for r in range(4):
            I(f"v_and_b32_dpp v{ab+r}, v{15+(c&1)}, v{5+r} row_newbcast:{BC[e]} row_mask:0xf bank_mask:0xf")
    for i, (t, j) in enumerate(order):
        s = slot(i)
        c, e = j >> 2, j & 3
        if t == "K":
            a.wait_vm(("kv", i))
            p = 19 + e
            I(f"v_dot2_f32_bf16 v{p}, v{s}, v9, 0")
            for k in range(1, 4): I(f"v_dot2_f32_bf16 v{p}, v{s+k}, v{9+k}, v{p}")
            issue_more(i + 1)
            if e == 1:
                I("v_add_f32_dpp v23, v19, v19 row_ror:8 row_mask:0xf bank_mask:0x3")
                I("v_add_f32_dpp v23, v20, v20 row_ror:8 row_mask:0xf bank_mask:0xc")
            if e == 3:
                I("v_add_f32_dpp v25, v23, v23 row_half_mirror row_mask:0xf bank_mask:0x5")
                I("v_add_f32_dpp v24, v21, v21 row_ror:8 row_mask:0xf bank_mask:0x3")
                I("v_add_f32_dpp v24, v22, v22 row_ror:8 row_mask:0xf bank_mask:0xc")
                I("v_add_f32_dpp v25, v24, v24 row_half_mirror row_mask:0xf bank_mask:0xa")
                I("v_add_f32_dpp v25, v25, v25 quad_perm:[1,0,3,2] row_mask:0xf bank_mask:0xf")
                I("v_add_f32_dpp v25, v25, v25 quad_perm:[2,3,0,1] row_mask:0xf bank_mask:0xf")
                rbf(25, 25)
                I(f"v_mul_f32 v25, {f32(128**-0.5)}, v25")
                rbf(25, 25)
                if dbg == "s":
                    I("s_lshl_b32 s100, s2, 14"); I(f"s_add_u32 s100, s100, {0x1000000 + c*2048}"); I("v_lshlrev_b32 v45, 2, v0"); I("v_add_u32 v45, s100, v45")
                    I(f"global_store_dword v45, v25, s[28:29]", count=False)
                I("v_max_f32_dpp v26, v25, v25 row_ror:4 row_mask:0xf bank_mask:0xf")
                I("v_max_f32_dpp v26, v26, v26 row_ror:8 row_mask:0xf bank_mask:0xf")
                rows_to_sgpr("v_max_f32", 26, "s100")
                if c == 0: I("v_mov_b32 v26, s100")
                else: I("v_max_f32 v26, s100, v13")
                if c == 7:
                    I(f"s_lshl_b32 s100, {sW}, 2"); I("v_mov_b32 v27, s100")
                    I(f"ds_write_b32 v27, v26 offset:{MXS}")
                    I("v_mov_b32 v27, 0")
                    a.lg0(); I("s_barrier")
                    I(f"ds_read_b128 {quad(XF)}, v27 offset:{MXS}"); I(f"ds_read_b128 {quad(XF+4)}, v27 offset:{MXS+16}")
                    a.lg0()
                    I(f"v_max3_f32 v26, v{XF}, v{XF+1}, v{XF+2}"); I(f"v_max3_f32 v27, v{XF+3}, v{XF+4}, v{XF+5}")
                    I(f"v_max3_f32 v26, v26, v{XF+6}, v{XF+7}"); I("v_max_f32 v26, v26, v27")
                I(f"v_mul_f32 v27, {sL2E}, v26")
                I(f"v_fma_f32 v25, v25, {sL2E}, -v27")
                I("v_exp_f32 v25, v25")
                if c == 0:
                    I("v_mov_b32 v14, v25")
                else:
                    al = 17 + (c & 1)
                    I(f"v_fma_f32 v{al}, v13, {sL2E}, -v27")
                    I(f"v_exp_f32 v{al}, v{al}")
                    I(f"v_fma_f32 v14, v14, v{al}, v25")
                I(f"v_cvt_pk_bf16_f32 v{15+(c&1)}, v25, v25")
                I("v_mov_b32 v13, v26")
                if c == 7:
                    I("v_add_f32_dpp v14, v14, v14 row_ror:4 row_mask:0xf bank_mask:0xf")
                    I("v_add_f32_dpp v14, v14, v14 row_ror:8 row_mask:0xf bank_mask:0xf")
                    I("v_add_f32_dpp v14, v14, v14 row_bcast:15 row_mask:0xa bank_mask:0xf")
                    I("v_add_f32_dpp v14, v14, v14 row_bcast:31 row_mask:0xc bank_mask:0xf")
                    I("v_mov_b32 v27, 0")
                    I("s_mov_b32 exec_lo, 0"); I("s_mov_b32 exec_hi, 0x80000000")
                    I(f"ds_add_f32 v27, v14 offset:{LS}")
                    I("s_mov_b64 exec, -1")
                    a.wait_vm("rdy")
                    I(f"s_mov_b32 {sCNT}, 200000")
                    a.fence()
                    a.label("L_rdy")
                    I("v_readfirstlane_b32 s100, v43")
                    I("s_cmp_ge_u32 s100, 256"); I("s_cbranch_scc1 L_rdy_ok")
                    I("global_load_dword v43, v27, s[26:27] sc1", count=False)
                    I(f"s_sub_u32 {sCNT}, {sCNT}, 1"); I("s_cbranch_scc1 L_end")
                    I("s_waitcnt vmcnt(0)")
                    I("s_branch L_rdy")
                    a.label("L_rdy_ok")
                    a.lg0(); I("s_barrier")
                    I(f"s_cmp_lg_u32 {sW}, 0"); I("s_cbranch_scc1 L_noml")
                    I(f"ds_read_b32 v{XF+1}, v27 offset:{LS}")
                    I(f"v_min_u32 v{XF}, -2, v13")
                    I(f"s_lshl_b32 s100, {sB}, 10"); I(f"s_lshl_b32 s101, {sH}, 5"); I("s_add_u32 s100, s100, s101")
                    I(f"s_lshl_b32 s101, {sSP}, 3"); I("s_add_u32 s100, s100, s101"); I(f"s_add_u32 s100, s100, {MLA}")
                    a.lg0()
                    I(f"v_min_u32 v{XF+1}, -2, v{XF+1}")
                    I("s_mov_b64 exec, 1")
                    I(f"buffer_store_dwordx2 v[{XF}:{XF+1}], v27, s[52:55], s100 offen sc1", count=False)
                    I("s_mov_b64 exec, -1")
                    a.label("L_noml")
                    stamp(3)
        else:
            build_A(j)
            if e == 0 and c > 0:
                for r in range(4): I(f"v_mul_f32 v{28+r}, v{28+r}, v{17+(c&1)}")
            a.wait_vm(("kv", i))
            ab = 32 + 4 * (j & 1)
            cc = "0" if j == 0 else quad(28)
            I(f"v_mfma_f32_16x16x32_bf16 {quad(28)}, {quad(ab)}, {quad(s)}, {cc}")
            issue_more(i + 1)
        if i >= perm_at and perm_steps:
            dst, src, pp, tt = perm_steps.pop(0)
            tag = ("wo", tt * 8 + 2 * pp + 1)
            assert tag not in a.vmq or True
            a.wait_vm(tag)
            perm_block(dst, src, [pp])
    assert not perm_steps and not sides, (perm_steps, sides)
    assert not a.vmq, a.vmq
    stamp(4)
    I("v_lshlrev_b32 v45, 5, v42"); I("v_lshl_add_u32 v45, v41, 4, v45")
    I("v_and_b32 v44, 1, v1"); I("v_lshlrev_b32 v44, 7, v44"); I("v_lshl_add_u32 v44, v41, 5, v44")
    I("s_mov_b32 exec_hi, 0")
    for r in range(4): I(f"ds_add_f32 v45, v{28+r} offset:{OS+4*r}")
    I("s_mov_b32 exec_hi, -1")
    I(f"s_lshl_b32 s100, {sH}, 2"); I(f"s_add_u32 s100, s100, {sSP}")
    I("s_and_b32 s101, s100, 7"); I("s_lshl_b32 s101, s101, 4"); I("s_lshr_b32 s100, s100, 3"); I("s_add_u32 s100, s100, s101")
    I("s_lshl_b32 s100, s100, 6")
    I(f"s_lshl_b32 s101, {sB}, 5"); I(f"s_lshl_b32 {sOFF}, {sW}, 2"); I(f"s_add_u32 s101, s101, {sOFF}"); I("s_lshl_b32 s101, s101, 13")
    I(f"s_add_u32 {sOFF}, s100, s101")
    I("v_lshrrev_b32 v43, 1, v42"); I("v_lshlrev_b32 v43, 13, v43")
    I("v_and_b32 v27, 1, v42"); I("v_lshl_add_u32 v43, v27, 5, v43"); I("v_lshl_add_u32 v43, v41, 4, v43")
    a.lg0(); I("s_barrier")
    OA = X1
    for k in range(4): I(f"ds_read_b128 {quad(OA+4*k)}, v44 offset:{OS + (k>>1)*256 + (k&1)*16}")
    ACC = RING
    for t in range(2):
        I(f"s_waitcnt lgkmcnt({2 - 2*t})")
        for k in range(4): I(f"v_cvt_pk_bf16_f32 v{32+4*t+k}, v{OA+8*t+2*k}, v{OA+8*t+2*k+1}")
    for t in range(2):
        B = T if t == 0 else X0
        for j in range(8):
            c = "0" if t == 0 else quad(ACC + 4 * j)
            I(f"v_mfma_f32_16x16x32_bf16 {quad(ACC+4*j)}, {quad(32+4*t)}, {quad(B+4*j)}, {c}")
    for j in range(8):
        I(f"v_add_f32_dpp v{28+(j&3)}, v{ACC+4*j+1}, v{ACC+4*j} row_ror:8 row_mask:0x{1 << (j>>2):x} bank_mask:0xf")
    for r in range(4): I(f"v_min_u32 v{28+r}, -2, v{28+r}")
    I("s_mov_b64 exec, 0x00ff00ff")
    I(f"buffer_store_dwordx4 {quad(28)}, v43, s[52:55], {sOFF} offen sc1")
    I("s_mov_b64 exec, -1")
    stamp(5)
    I(f"s_cmp_lt_u32 s2, {NFFN}"); I("s_cbranch_scc1 L_ffn")
    I("s_sub_u32 s100, s2, 64"); I("s_cmp_ge_u32 s100, 64"); I("s_cbranch_scc1 L_exit")
    I(f"s_cmp_lg_u32 {sW}, 0"); I("s_cbranch_scc1 L_exit")
    a.vmq = []
    I("s_lshr_b32 s101, s100, 5"); I("s_lshl_b32 s101, s101, 10")
    I("s_lshl_b32 s68, s100, 5")
    I("v_and_b32 v27, 3, v1"); I("v_lshlrev_b32 v26, 3, v27"); I("v_lshl_add_u32 v25, v41, 1, v26"); I("v_add_u32 v25, s68, v25")
    I("global_load_ushort v24, v25, s[4:5]")
    I("v_lshrrev_b32 v23, 2, v1"); I("v_lshlrev_b32 v22, 11, v23"); I("v_add_u32 v22, v22, v26")
    I(f"s_add_u32 s68, s68, {HIN}")
    I("v_lshlrev_b32 v23, 6, v23")
    I(f"s_add_u32 s101, s101, {MLA}")
    I("s_lshl_b32 s69, s100, 13")
    I("v_lshlrev_b32 v21, 4, v1")
    I(f"s_mov_b32 {sCNT}, 200000")
    ML = X0
    a.fence(); a.label("L_mlpoll")
    for k in range(4): I(f"buffer_load_dwordx4 {quad(ML+4*k)}, v23, s[52:55], s101 offen offset:{16*k} sc1")
    I(f"s_sub_u32 {sCNT}, {sCNT}, 1"); I("s_cbranch_scc1 L_end")
    a.wait_vm_all()
    I(f"v_max3_u32 v20, v{ML}, v{ML+1}, v{ML+2}")
    for k in range(3, 15, 2): I(f"v_max3_u32 v20, v20, v{ML+k}, v{ML+k+1}")
    I(f"v_max_u32 v20, v20, v{ML+15}")
    I("v_cmp_eq_u32 vcc, -1, v20")
    I("s_cbranch_vccnz L_mlpoll")
    stamp(6)
    ZR = RING
    def zloads():
        for k in range(8):
            if k < 4: I(f"buffer_load_dwordx4 {quad(ZR+4*k)}, v21, s[52:55], s69 offen offset:{1024*k} sc1")
            else: I(f"buffer_load_dwordx4 {quad(ZR+4*k)}, v19, s[52:55], s69 offen offset:{1024*(k-4)} sc1")
    I("v_add_u32 v19, 4096, v21")
    zloads()
    for hh in range(2):
        m = [ML + 8 * hh + 2 * k for k in range(4)]
        I(f"v_max3_f32 v20, v{m[0]}, v{m[1]}, v{m[2]}"); I(f"v_max_f32 v20, v20, v{m[3]}")
        I(f"v_mul_f32 v20, {sL2E}, v20")
        for k in range(4): I(f"v_fma_f32 v{T+4*hh+k}, v{m[k]}, {sL2E}, -v20")
        for k in range(4): I(f"v_exp_f32 v{T+4*hh+k}, v{T+4*hh+k}")
        I(f"v_mul_f32 v20, v{T+4*hh}, v{m[0]+1}")
        for k in range(1, 4): I(f"v_fmac_f32 v20, v{T+4*hh+k}, v{m[k]+1}")
        I("v_rcp_f32 v20, v20")
        for k in range(4): I(f"v_mul_f32 v{T+4*hh+k}, v{T+4*hh+k}, v20")
    I("v_lshlrev_b32 v24, 16, v24")
    I("s_branch L_zchk")
    a.label("L_zpoll")
    zloads()
    I(f"s_sub_u32 {sCNT}, {sCNT}, 1"); I("s_cbranch_scc1 L_end")
    a.label("L_zchk")
    a.wait_vm_all()
    I(f"v_max3_u32 v20, v{ZR}, v{ZR+1}, v{ZR+2}"); I(f"v_max3_u32 v18, v{ZR+3}, v{ZR+4}, v{ZR+5}")
    for k in range(6, 30, 4):
        I(f"v_max3_u32 v20, v20, v{ZR+k}, v{ZR+k+1}"); I(f"v_max3_u32 v18, v18, v{ZR+k+2}, v{ZR+k+3}")
    I(f"v_max3_u32 v20, v20, v{ZR+30}, v{ZR+31}"); I("v_max_u32 v20, v20, v18")
    I("v_cmp_eq_u32 vcc, -1, v20")
    I("s_cbranch_vccnz L_zpoll")
    stamp(7)
    for r in range(4): I(f"v_mul_f32 v{28+r}, v{ZR+r}, v{T}")
    for k in range(1, 8):
        for r in range(4): I(f"v_fmac_f32 v{28+r}, v{ZR+4*k+r}, v{T+k}")
    I("v_permlane16_swap_b32 v28, v29"); I("v_permlane16_swap_b32 v30, v31")
    I("v_add_f32 v28, v28, v29"); I("v_add_f32 v30, v30, v31")
    I("v_permlane32_swap_b32 v28, v30"); I("v_add_f32 v28, v28, v30")
    I("v_add_f32_dpp v28, v28, v28 row_ror:4 row_mask:0xf bank_mask:0xf")
    I("v_add_f32_dpp v28, v28, v28 row_ror:8 row_mask:0xf bank_mask:0xf")
    rbf(28, 28)
    I("v_add_f32 v28, v28, v24")
    I("v_mov_b32 v29, v28")
    I("v_permlane16_swap_b32 v28, v29")
    I("v_cvt_pk_bf16_f32 v28, v28, v29")
    I("v_min_u32 v28, -2, v28")
    I("v_mov_b32 v29, v28")
    I("v_permlane32_swap_b32 v28, v29")
    I("buffer_store_dwordx2 v[28:29], v22, s[52:55], s68 offen sc1")
    stamp(8)
    I("s_branch L_exit")

    a.label("L_ffn", pad=2)
    a.vmq = []
    WA = RING
    WD = RING + 32
    I("v_lshrrev_b32 v27, 2, v42"); I("v_lshl_add_u32 v27, v41, 3, v27")
    I("v_and_b32 v26, 3, v42"); I("v_lshlrev_b32 v26, 3, v26"); I("v_add_u32 v26, s71, v26")
    I("v_lshl_add_u32 v25, v27, 6, v26")
    I("v_lshl_add_u32 v24, v27, 7, v26")
    for t in range(2):
        for tile in range(4):
            for half in range(2):
                r = WA + 16 * t + 4 * tile + 2 * half
                off = (tile >> 1) * 4096 + t * 2048 + half * 256 + (tile & 1) * 32
                I(f"ds_read_b64_tr_b16 v[{r}:{r+1}], v25 offset:{off}")
    a.lg0()
    for tile in range(4):
        for half in range(2):
            r = WD + 4 * tile + 2 * half
            I(f"ds_read_b64_tr_b16 v[{r}:{r+1}], v24 offset:{8192 + half*512 + tile*32}")
    I("v_and_b32 v27, 1, v42")
    I("v_lshlrev_b32 v26, 10, v27"); I("v_lshl_add_u32 v26, v40, 7, v26"); I("v_lshl_add_u32 v26, v41, 4, v26"); I(f"v_add_u32 v26, {LN2}, v26")
    I("v_lshlrev_b32 v25, 6, v27"); I("v_lshl_add_u32 v25, v40, 7, v25"); I("v_lshl_add_u32 v25, v41, 4, v25"); I(f"v_add_u32 v25, {GU}, v25")
    I("v_lshrrev_b32 v24, 1, v42"); I(f"v_mov_b32 v23, {ZERO}")
    for tile in range(4):
        I(f"v_cmp_eq_u32 vcc, {tile}, v24")
        I(f"v_cndmask_b32 v{5+tile}, v23, v26, vcc"); I(f"v_cndmask_b32 v{9+tile}, v23, v25, vcc")
    I("v_bfe_u32 v23, v42, 2, 1"); I("v_lshlrev_b32 v13, 8, v23"); I("v_lshl_add_u32 v13, v27, 7, v13")
    I("v_bfe_u32 v23, v42, 1, 1"); I("v_lshl_add_u32 v13, v23, 6, v13"); I("v_lshl_add_u32 v13, v41, 4, v13")
    I("v_and_b32 v23, 3, v24"); I("v_lshl_add_u32 v23, v40, 2, v23"); I("v_mul_u32_u24 v14, 6144, v23")
    I("v_lshl_add_u32 v14, v27, 6, v14"); I("v_lshl_add_u32 v14, v41, 4, v14")
    I("s_lshl_b32 s68, s2, 7"); I(f"s_add_u32 s68, s68, {YIN}")
    I("v_lshlrev_b32 v15, 2, v1")
    I("v_lshlrev_b32 v16, 1, v0"); I(f"v_add_u32 v16, {GU}, v16")
    I(f"s_cmp_lg_u32 {sW}, 0"); I("s_cbranch_scc1 L_ffn_wait")
    HR, WR, F = X0, X0 + 8, X0 + 16
    I("v_lshrrev_b32 v27, 5, v1"); I("v_and_b32 v26, 31, v1"); I("v_lshlrev_b32 v26, 4, v26")
    I("v_lshl_add_u32 v25, v27, 10, v26")
    I(f"global_load_dwordx4 {quad(WR)}, v26, s[16:17]"); I(f"global_load_dwordx4 {quad(WR+4)}, v26, s[16:17] offset:512")
    I("s_and_b32 s100, s2, 15"); I("s_lshl_b32 s100, s100, 11"); I(f"s_add_u32 s100, s100, {HIN}")
    I(f"s_mov_b32 {sCNT}, 200000")
    a.fence(); a.label("L_hpoll")
    I(f"buffer_load_dwordx4 {quad(HR)}, v25, s[52:55], s100 offen sc1")
    I(f"buffer_load_dwordx4 {quad(HR+4)}, v25, s[52:55], s100 offen offset:512 sc1")
    I(f"s_sub_u32 {sCNT}, {sCNT}, 1"); I("s_cbranch_scc1 L_end")
    a.wait_vm_all()
    I(f"v_max3_u32 v20, v{HR}, v{HR+1}, v{HR+2}"); I(f"v_max3_u32 v21, v{HR+3}, v{HR+4}, v{HR+5}")
    I(f"v_max3_u32 v20, v20, v{HR+6}, v{HR+7}"); I("v_max_u32 v20, v20, v21")
    I("v_cmp_eq_u32 vcc, -1, v20")
    I("s_cbranch_vccnz L_hpoll")
    stamp(6)
    def half_allreduce(v, tmp):
        row_allreduce("v_add_f32", v)
        I(f"v_mov_b32 v{tmp}, v{v}"); I(f"v_permlane16_swap_b32 v{v}, v{tmp}"); I(f"v_add_f32 v{v}, v{v}, v{tmp}")
    unpack(F, HR, 8)
    for k in range(4): I(f"v_add_f32 v{19+k}, v{F+k}, v{F+4+k}")
    for k in range(4): I(f"v_add_f32 v{19+k}, v{19+k}, v{F+8+k}")
    for k in range(4): I(f"v_add_f32 v{19+k}, v{19+k}, v{F+12+k}")
    I("v_add_f32 v19, v19, v20"); I("v_add_f32 v21, v21, v22"); I("v_add_f32 v19, v19, v21")
    half_allreduce(19, 20)
    I(f"v_mul_f32 v23, {f32(1.0/512)}, v19")
    for k in range(16): I(f"v_sub_f32 v{F+k}, v{F+k}, v23")
    for k in range(4): I(f"v_mul_f32 v{19+k}, v{F+k}, v{F+k}")
    for k in range(4, 16): I(f"v_fmac_f32 v{19+(k&3)}, v{F+k}, v{F+k}")
    I("v_add_f32 v19, v19, v20"); I("v_add_f32 v21, v21, v22"); I("v_add_f32 v19, v19, v21")
    half_allreduce(19, 20)
    rbf(23, 23)
    ln_stats_tail(19, 23, 24, 20)
    L2R = X1
    ln_apply(L2R, HR, 8, 23, 24, F)
    I(f"ds_write_b128 v25, {quad(L2R)} offset:{LN2}"); I(f"ds_write_b128 v25, {quad(L2R+4)} offset:{LN2+512}")
    I(f"ds_write_b128 v25, {quad(HR)} offset:{HS}"); I(f"ds_write_b128 v25, {quad(HR+4)} offset:{HS+512}")
    a.label("L_ffn_wait")
    a.lg0(); I("s_barrier")
    BR = T
    for t in range(2):
        for tile in range(4): I(f"ds_read_b128 {quad(BR+16*t+4*tile)}, v{5+tile} offset:{t*64}")
    for u in range(8):
        I(f"s_waitcnt lgkmcnt({7-u})")
        I(f"v_mfma_f32_16x16x32_bf16 {quad(28)}, {quad(WA+4*u)}, {quad(BR+4*u)}, {'0' if u == 0 else quad(28)}")
    I("s_mov_b32 exec_lo, 0x00ff00ff"); I("s_mov_b32 exec_hi, 0x00ff00ff")
    for r in range(4): I(f"ds_add_f32 v13, v{28+r} offset:{GS+4*r}")
    I("s_mov_b64 exec, -1")
    a.lg0(); I("s_barrier")
    I(f"ds_read_b32 v18, v15 offset:{GS}"); I(f"ds_read_b32 v19, v15 offset:{GS+256}")
    I("s_waitcnt lgkmcnt(1)")
    rbf(18, 18)
    I(f"v_mul_f32 v20, {f32(-LOG2E)}, v18"); I("v_exp_f32 v20, v20"); I("v_add_f32 v20, 1.0, v20"); I("v_rcp_f32 v20, v20")
    a.lg0()
    rbf(19, 19)
    I("v_mul_f32 v18, v18, v20")
    rbf(18, 18)
    I("v_mul_f32 v18, v18, v19")
    I("v_cvt_pk_bf16_f32 v18, v18, v18")
    I("ds_write_b16 v16, v18")
    a.lg0()
    for tile in range(4): I(f"ds_read_b128 {quad(BR+4*tile)}, v{9+tile}")
    for u in range(4):
        I(f"s_waitcnt lgkmcnt({3-u})")
        I(f"v_mfma_f32_16x16x32_bf16 {quad(28)}, {quad(WD+4*u)}, {quad(BR+4*u)}, {'0' if u == 0 else quad(28)}")
    for r in range(4): I(f"v_min_u32 v{28+r}, -2, v{28+r}")
    I("s_mov_b32 exec_lo, 0x00ff00ff"); I("s_mov_b32 exec_hi, 0x00ff00ff")
    I(f"buffer_store_dwordx4 {quad(28)}, v14, s[52:55], s68 offen sc1")
    I("s_mov_b64 exec, -1")
    stamp(7)
    I(f"s_cmp_lg_u32 {sW}, 0"); I("s_cbranch_scc1 L_exit")
    I("s_cmp_ge_u32 s2, 32"); I("s_cbranch_scc1 L_exit")
    I("s_mul_i32 s100, s2, 6144"); I(f"s_add_u32 s100, s100, {YIN}")
    I("s_add_u32 s48, s28, s100"); I("s_addc_u32 s49, s29, 0"); I(f"s_mov_b32 s50, {NFFN*128}"); I("s_mov_b32 s51, 0x20000")
    I("v_lshlrev_b32 v21, 4, v1"); I("v_add_u32 v22, 4096, v21")
    YR = RING
    def yloads():
        for k in range(6):
            if k < 4: I(f"buffer_load_dwordx4 {quad(YR+4*k)}, v21, s[48:51], 0 offen offset:{1024*k} sc1")
            else: I(f"buffer_load_dwordx4 {quad(YR+4*k)}, v22, s[48:51], 0 offen offset:{1024*(k-4)} sc1")
    yloads()
    I(f"v_dot2_f32_bf16 v19, v{L2R}, v{WR}, 0")
    for k in range(1, 8): I(f"v_dot2_f32_bf16 v19, v{L2R+k}, v{WR+k}, v19")
    half_allreduce(19, 20)
    rbf(19, 19)
    I(f"v_mul_f32 v20, {f32(-LOG2E)}, v19"); I("v_exp_f32 v20, v20"); I("v_add_f32 v20, 1.0, v20"); I("v_rcp_f32 v20, v20")
    rbf(20, 20)
    I("v_readlane_b32 s100, v20, 0"); I("v_readlane_b32 s101, v20, 32")
    I("v_bfe_u32 v27, v1, 2, 1")
    I("v_cmp_eq_u32 vcc, 1, v27"); I("v_mov_b32 v19, s100"); I("v_mov_b32 v20, s101"); I("v_cndmask_b32 v19, v19, v20, vcc")
    I("v_and_b32 v26, 3, v1"); I("v_lshlrev_b32 v26, 3, v26"); I("v_lshl_add_u32 v26, v41, 1, v26"); I("v_lshl_add_u32 v26, v27, 10, v26")
    I("s_lshl_b32 s100, s2, 5"); I("v_add_u32 v26, s100, v26")
    I(f"ds_read_u16 v24, v26 offset:{LN2}"); I(f"ds_read_u16 v25, v26 offset:{HS}")
    a.lg0()
    I("v_lshlrev_b32 v24, 16, v24"); I("v_lshlrev_b32 v25, 16, v25")
    I(f"s_mov_b32 {sCNT}, 200000")
    I("s_branch L_ychk")
    a.label("L_ypoll")
    yloads()
    I(f"s_sub_u32 {sCNT}, {sCNT}, 1"); I("s_cbranch_scc1 L_end")
    a.label("L_ychk")
    a.wait_vm_all()
    I(f"v_max3_u32 v20, v{YR}, v{YR+1}, v{YR+2}"); I(f"v_max3_u32 v18, v{YR+3}, v{YR+4}, v{YR+5}")
    for k in range(6, 22, 4):
        I(f"v_max3_u32 v20, v20, v{YR+k}, v{YR+k+1}"); I(f"v_max3_u32 v18, v18, v{YR+k+2}, v{YR+k+3}")
    I(f"v_max3_u32 v20, v20, v{YR+22}, v{YR+23}"); I("v_max_u32 v20, v20, v18")
    I("v_cmp_eq_u32 vcc, -1, v20")
    I("s_cbranch_vccnz L_ypoll")
    stamp(8)
    for r in range(4): I(f"v_add_f32 v{28+r}, v{YR+r}, v{YR+4+r}")
    for r in range(4): I(f"v_add_f32 v{32+r}, v{YR+8+r}, v{YR+12+r}")
    for r in range(4): I(f"v_add_f32 v{36+r}, v{YR+16+r}, v{YR+20+r}")
    for r in range(4): I(f"v_add_f32 v{28+r}, v{28+r}, v{32+r}")
    for r in range(4): I(f"v_add_f32 v{28+r}, v{28+r}, v{36+r}")
    I("v_permlane16_swap_b32 v28, v29"); I("v_permlane16_swap_b32 v30, v31")
    I("v_add_f32 v28, v28, v29"); I("v_add_f32 v30, v30, v31")
    I("v_permlane32_swap_b32 v28, v30"); I("v_add_f32 v28, v28, v30")
    I("v_add_f32_dpp v28, v28, v28 row_ror:8 row_mask:0xf bank_mask:0xf")
    rbf(28, 28)
    I("v_mul_f32 v28, v28, v19"); rbf(28, 28)
    I("v_add_f32 v28, v28, v24"); rbf(28, 28)
    I("v_add_f32 v28, v28, v25")
    I("v_cvt_pk_bf16_f32 v28, v28, v28")
    I("s_mov_b32 exec_lo, 0x00ff00ff"); I("s_mov_b32 exec_hi, 0x00ff00ff")
    I("global_store_short v26, v28, s[24:25]")
    I("s_mov_b64 exec, -1")
    if stamps:
        I("s_waitcnt vmcnt(0)")
        stamp(9)
    a.label("L_exit", pad=1)
    if stamps:
        I(f"s_cmp_lg_u32 {sW}, 0"); I("s_cbranch_scc1 L_end")
        a.lg0()
        I("s_lshl_b32 s100, s2, 7"); I("s_add_u32 s100, s100, 0x20000000"); I("v_mov_b32 v26, s100")
        I("s_mov_b64 exec, 1")
        for i in range(10):
            I(f"v_mov_b32 v28, s{80+2*i}"); I(f"v_mov_b32 v29, s{81+2*i}")
            I(f"global_store_dwordx2 v26, v[28:29], s[28:29] offset:{8*i}")
        I("s_getreg_b32 s100, hwreg(HW_REG_XCC_ID)"); I("s_getreg_b32 s101, hwreg(HW_REG_HW_ID)")
        I("v_mov_b32 v28, s100"); I("v_mov_b32 v29, s101")
        I("global_store_dwordx2 v26, v[28:29], s[28:29] offset:120")
    a.label("L_end")
    I("s_endpgm")
    a.raw('.section .rodata,"a"'); a.raw(".p2align 6"); a.raw(f".amdhsa_kernel {NAME}_kernel")
    for l in ["next_free_vgpr 256", "next_free_sgpr 102", "accum_offset 256", "group_segment_fixed_size 0", "kernarg_size 104",
              "user_sgpr_count 2", "user_sgpr_kernarg_segment_ptr 1", "system_sgpr_workgroup_id_x 1", "float_denorm_mode_32 3"]:
        a.raw("  .amdhsa_" + l)
    a.raw(".end_amdhsa_kernel")
    return a.text()

if __name__ == "__main__":
    import argparse
    ap = argparse.ArgumentParser()
    ap.add_argument("out"); ap.add_argument("--kw", default="")
    x = ap.parse_args()
    kw = eval("dict(" + x.kw + ")")
    open(x.out, "w").write(gen(**kw))
```

```python
import sys, struct
from asmlib import Asm
NAME = "sequential_preLN__sliding_block_cached__moe_arch_mod__decode"
HEADER = open("cdna_kernels/" + NAME + ".s.ref").read().split("; Override launch")[0]

def f32(x): return "0x%08x" % struct.unpack("<I", struct.pack("<f", x))[0]
LOG2E = 1.4426950408889634

ZIN = 0x00000
YIN = 0x80000
HIN = 0xB0000
MLA = 0xB8000
QS, OS, GS, ZERO, LS, MXS = 0x000, 0x200, 0x400, 0x600, 0x700, 0x740
LN2, HS, GU, FW = 0x1000, 0x1800, 0x2000, 0x4000
LDS_BYTES = FW + 8 * 12288
NFFN = 43

def gen(NS=24, D=12, stamps=False, nt=True, LEAD=4, wo_at=20, ffn_at=36, perm_at=50, dbg=None, dbgst=False):
    a = Asm(); I = a.I
    NT = " nt" if nt else ""
    a.raw(HEADER.rstrip("\n"))
    a.raw(f"; @launch grid=(256,1,1) block=(512,1,1) lds={LDS_BYTES}")
    a.raw('.amdgcn_target "amdgcn-amd-amdhsa--gfx950"')
    a.raw(".text"); a.raw(f".globl {NAME}_kernel"); a.raw(".p2align 8")
    a.raw(f".type {NAME}_kernel,@function"); a.raw(f"{NAME}_kernel:")
    RING, X0, X1, T = 48, 144, 176, 208
    XF, XA = 240, 244
    sH, sB, sSP, sW, sOFF, sCNT = "s72", "s73", "s74", "s75", "s76", "s77"
    sL2E, sSELLO, sSELHI = "s30", "s31", "s3"
    def stamp(i):
        if stamps: I(f"s_memrealtime s[{80+2*i}:{81+2*i}]")
    def quad(r): return f"v[{r}:{r+3}]"

    I("s_cmp_ge_u32 s2, 256"); I("s_cbranch_scc1 L_end")
    I("s_load_dwordx16 s[4:19], s[0:1], 0")
    I("s_load_dwordx8 s[20:27], s[0:1], 64")
    I("s_load_dwordx2 s[28:29], s[0:1], 96")
    if stamps:
        for i in range(82, 100): I(f"s_mov_b32 s{i}, 0")
    stamp(0)
    if dbgst: I("s_memtime s[78:79]")
    I("v_and_b32 v1, 63, v0")
    I("v_lshrrev_b32 v40, 6, v0")
    I("v_lshlrev_b32 v2, 4, v0")
    I(f"v_readfirstlane_b32 {sW}, v40")
    I(f"s_and_b32 {sH}, s2, 31")
    I(f"s_bfe_u32 {sB}, s2, 0x10005")
    I(f"s_lshr_b32 {sSP}, s2, 6")
    I("v_lshrrev_b32 v41, 4, v1")
    I("v_and_b32 v42, 15, v1")
    I(f"s_lshl_b32 s100, {sB}, 10")
    I("v_lshlrev_b32 v43, 4, v1"); I("v_add_u32 v43, s100, v43")
    I("v_lshlrev_b32 v44, 7, v40"); I("v_lshl_add_u32 v44, v41, 4, v44"); I("v_add_u32 v44, s100, v44")
    I("v_lshlrev_b32 v3, 19, v40"); I("v_lshl_add_u32 v3, v41, 16, v3"); I("v_lshl_add_u32 v3, v42, 4, v3")
    I(f"s_lshl_b32 s100, {sB}, 27"); I(f"s_lshl_b32 s101, {sH}, 22"); I("s_add_u32 s100, s100, s101")
    I(f"s_lshl_b32 s101, {sSP}, 18"); I("s_add_u32 s100, s100, s101"); I("s_add_u32 s100, s100, 0x300000")
    I("s_mov_b32 s34, 0x40000"); I("s_mov_b32 s35, 0x20000"); I("s_mov_b32 s38, 0x40000"); I("s_mov_b32 s39, 0x20000")
    I(f"s_lshl_b32 s101, {sH}, 8")
    I("s_sub_u32 s42, 0x400000, s101"); I("s_mov_b32 s43, 0x20000")
    a.lg0()
    I(f"global_load_dwordx4 {quad(XF)}, v43, s[4:5]", tag="XF")
    I("s_add_u32 s32, s6, s100"); I("s_addc_u32 s33, s7, 0")
    I(f"global_load_dwordx4 {quad(XA)}, v44, s[4:5]", tag="XA0")
    I("s_add_u32 s36, s8, s100"); I("s_addc_u32 s37, s9, 0")
    I(f"global_load_dwordx4 {quad(XA+4)}, v44, s[4:5] offset:64", tag="XA1")
    I("s_add_u32 s40, s10, s101"); I("s_addc_u32 s41, s11, 0")

    order = [("K", j) for j in range(LEAD)]
    for j in range(32 - LEAD): order += [("K", j + LEAD), ("V", j)]
    order += [("V", j) for j in range(32 - LEAD, 32)]
    assert len(order) == 64
    issued = [0]
    def slot(i): return RING + 4 * (i % NS)
    def issue_kv():
        i = issued[0]; t, j = order[i]
        srd = "s[32:35]" if t == "K" else "s[36:39]"
        if j == 0:
            I(f"buffer_load_dwordx4 {quad(slot(i))}, v2, {srd}, 0 offen{NT}", tag=("kv", i))
        else:
            I(f"s_mov_b32 {sOFF}, {j*8192}")
            I(f"buffer_load_dwordx4 {quad(slot(i))}, v2, {srd}, {sOFF} offen{NT}", tag=("kv", i))
        issued[0] += 1
    def issue_wq(u):
        t, i = u >> 3, u & 7
        r = (X0 if t == 0 else X1) + 4 * i
        off = (t * 32 + i) * 8192
        if off == 0: I(f"buffer_load_dwordx4 {quad(r)}, v3, s[40:43], 0 offen{NT}", tag=("wq", u))
        else:
            I(f"s_mov_b32 {sOFF}, {off}")
            I(f"buffer_load_dwordx4 {quad(r)}, v3, s[40:43], {sOFF} offen{NT}", tag=("wq", u))
    for blk in range(4):
        issue_kv(); issue_kv()
        for u in range(4): issue_wq(blk * 4 + u)
    I("s_mov_b32 s52, s28"); I("s_mov_b32 s53, s29"); I("s_mov_b32 s54, 0x100000"); I("s_mov_b32 s55, 0x20000")
    for r in range(4): I(f"v_mov_b32 v{32+r}, -1")
    I("v_lshlrev_b32 v45, 9, v40"); I("v_lshl_add_u32 v45, v1, 4, v45")
    I("s_lshl_b32 s100, s2, 12")
    I("s_mov_b32 exec_hi, 0")
    I("buffer_store_dwordx4 v[32:35], v45, s[52:55], s100 offen sc1", tag="clr")
    I("s_mov_b32 exec_hi, -1")
    while issued[0] < NS: issue_kv()
    I("v_lshlrev_b32 v45, 2, v0"); I("v_mov_b32 v46, 0")
    I("ds_write_b32 v45, v46")
    I(f"s_mov_b32 {sL2E}, {f32(LOG2E)}"); I(f"s_mov_b32 {sSELLO}, 0x05040100"); I(f"s_mov_b32 {sSELHI}, 0x07060302")
    I("v_and_b32 v45, 1, v1"); I("v_lshlrev_b32 v45, 4, v45")
    I("v_mov_b32 v46, 0xffff"); I("v_lshlrev_b32 v46, v45, v46")
    I("v_bfe_u32 v45, v1, 1, 2")
    for r in range(4):
        I(f"v_cmp_eq_u32 vcc, {r}, v45")
        I(f"v_cndmask_b32 v{5+r}, 0, v46, vcc")
    I("v_bfe_u32 v45, v1, 3, 1"); I("v_lshlrev_b32 v4, 15, v45"); I("v_lshl_add_u32 v4, v41, 13, v4")
    I("v_lshl_add_u32 v4, v40, 7, v4"); I("v_and_b32 v45, 7, v1"); I("v_lshl_add_u32 v4, v45, 4, v4")
    I(f"s_lshl_b32 s100, {sH}, 17")
    I("s_add_u32 s44, s12, s100"); I("s_addc_u32 s45, s13, 0"); I("s_mov_b32 s46, 0x20000"); I("s_mov_b32 s47, 0x20000")
    I(f"s_min_u32 s70, s2, {NFFN-1}")
    I("s_lshl_b32 s100, s70, 6")
    I("s_add_u32 s56, s18, s100"); I("s_addc_u32 s57, s19, 0")
    I("s_add_u32 s60, s20, s100"); I("s_addc_u32 s61, s21, 0")
    I(f"s_sub_u32 s101, {512*2752}, s100")
    I("s_lshl_b32 s100, s70, 15")
    I("s_add_u32 s64, s22, s100"); I("s_addc_u32 s65, s23, 0")
    I(f"s_cmp_lt_u32 s2, {NFFN}")
    I("s_cselect_b32 s58, s101, 0"); I("s_cselect_b32 s62, s101, 0"); I("s_cselect_b32 s66, 0x8000, 0")
    I("s_mov_b32 s59, 0x20000"); I("s_mov_b32 s63, 0x20000"); I("s_mov_b32 s67, 0x20000")
    I("v_lshrrev_b32 v45, 2, v1"); I("v_lshl_add_u32 v45, v40, 6, v45")
    I("v_mul_u32_u24 v46, 2752, v45"); I("v_and_b32 v45, 3, v1"); I("v_lshl_add_u32 v46, v45, 4, v46")
    I("v_lshrrev_b32 v45, 3, v1"); I("v_lshlrev_b32 v47, 10, v45"); I("v_lshl_add_u32 v47, v40, 7, v47")
    I("v_and_b32 v45, 7, v1"); I("v_lshl_add_u32 v47, v45, 4, v47")
    I(f"s_mul_i32 s71, {sW}, 12288"); I(f"s_add_u32 s71, s71, {FW}")
    a.lg0()
    I("s_barrier")

    def row_allreduce(op, v):
        I(f"{op}_dpp v{v}, v{v}, v{v} quad_perm:[1,0,3,2] row_mask:0xf bank_mask:0xf")
        I(f"{op}_dpp v{v}, v{v}, v{v} quad_perm:[2,3,0,1] row_mask:0xf bank_mask:0xf")
        I(f"{op}_dpp v{v}, v{v}, v{v} row_ror:4 row_mask:0xf bank_mask:0xf")
        I(f"{op}_dpp v{v}, v{v}, v{v} row_ror:8 row_mask:0xf bank_mask:0xf")
    def rows_to_sgpr(op, v, s):
        I(f"{op}_dpp v{v}, v{v}, v{v} row_bcast:15 row_mask:0xa bank_mask:0xf")
        I(f"{op}_dpp v{v}, v{v}, v{v} row_bcast:31 row_mask:0xc bank_mask:0xf")
        I(f"v_readlane_b32 {s}, v{v}, 63")
    def rbf(d, s):
        I(f"v_cvt_pk_bf16_f32 v{d}, v{s}, v{s}"); I(f"v_and_b32 v{d}, 0xffff0000, v{d}")
    def unpack(dst, src, n):
        for k in range(n):
            I(f"v_lshlrev_b32 v{dst+2*k}, 16, v{src+k}"); I(f"v_and_b32 v{dst+2*k+1}, 0xffff0000, v{src+k}")
    def ln_stats_tail(vsum2, vm, vrinv, tmp):
        I(f"v_mul_f32 v{tmp}, {f32(1.0/512)}, v{vsum2}")
        rbf(tmp, tmp)
        I(f"v_add_f32 v{tmp}, {f32(1e-5)}, v{tmp}")
        rbf(tmp, tmp)
        I(f"v_sqrt_f32 v{tmp}, v{tmp}")
        rbf(tmp, tmp)
        I(f"v_rcp_f32 v{vrinv}, v{tmp}")
    def ln_apply(dst, src, n, vm, vrinv, tmp):
        for k in range(n):
            t0, t1 = tmp + 2 * (k & 1), tmp + 2 * (k & 1) + 1
            I(f"v_lshlrev_b32 v{t0}, 16, v{src+k}"); I(f"v_and_b32 v{t1}, 0xffff0000, v{src+k}")
            I(f"v_sub_f32 v{t0}, v{t0}, v{vm}"); I(f"v_sub_f32 v{t1}, v{t1}, v{vm}")
            I(f"v_cvt_pk_bf16_f32 v{t1}, v{t0}, v{t1}")
            I(f"v_lshlrev_b32 v{t0}, 16, v{t1}"); I(f"v_and_b32 v{t1}, 0xffff0000, v{t1}")
            I(f"v_mul_f32 v{t0}, v{t0}, v{vrinv}"); I(f"v_mul_f32 v{t1}, v{t1}, v{vrinv}")
            I(f"v_cvt_pk_bf16_f32 v{dst+k}, v{t0}, v{t1}")
    def perm_block(dst, src, pps=range(4)):
        for pp in pps:
            for c in range(4):
                lo, hi = src + 4 * (2 * pp) + c, src + 4 * (2 * pp + 1) + c
                I(f"v_perm_b32 v{dst + 4*(2*c) + pp}, v{hi}, v{lo}, {sSELLO}")
                I(f"v_perm_b32 v{dst + 4*(2*c+1) + pp}, v{hi}, v{lo}, {sSELHI}")

    a.wait_vm("XF")
    stamp(1)
    unpack(T, XF, 4)
    I(f"v_add_f32 v19, v{T}, v{T+1}"); I(f"v_add_f32 v20, v{T+2}, v{T+3}"); I(f"v_add_f32 v21, v{T+4}, v{T+5}"); I(f"v_add_f32 v22, v{T+6}, v{T+7}")
    I("v_add_f32 v19, v19, v20"); I("v_add_f32 v21, v21, v22"); I("v_add_f32 v19, v19, v21")
    row_allreduce("v_add_f32", 19); rows_to_sgpr("v_add_f32", 19, "s100")
    I(f"v_mov_b32 v20, {f32(1.0/512)}")
    I("v_mul_f32 v20, s100, v20")
    for k in range(8): I(f"v_sub_f32 v{T+k}, v{T+k}, v20")
    I(f"v_mul_f32 v19, v{T}, v{T}"); I(f"v_mul_f32 v21, v{T+1}, v{T+1}")
    for k in range(2, 8): I(f"v_fmac_f32 v{19 if k % 2 == 0 else 21}, v{T+k}, v{T+k}")
    I("v_add_f32 v19, v19, v21")
    row_allreduce("v_add_f32", 19); rows_to_sgpr("v_add_f32", 19, "s100")
    rbf(20, 20)
    I("v_mov_b32 v19, s100")
    ln_stats_tail(19, 20, 21, 22)
    a.wait_vm("XA1")
    ln_apply(XA, XA, 8, 20, 21, 23)
    for t in range(2):
        src = X0 if t == 0 else X1
        for pp in range(4):
            a.wait_vm(("wq", t * 8 + 2 * pp + 1))
            perm_block(T, src, [pp])
        for j in range(8):
            c = "0" if t == 0 else quad(X0 + 4 * j)
            I(f"v_mfma_f32_16x16x32_bf16 {quad(X0+4*j)}, {quad(XA+4*t)}, {quad(T+4*j)}, {c}")
    I(f"v_lshlrev_b32 v45, 5, v42")
    I("s_mov_b64 exec, 0xffff")
    for j in range(8): I(f"ds_add_f32 v45, v{X0+4*j} offset:{QS+4*j}")
    I("s_mov_b64 exec, -1")
    a.wait_vm("clr")
    a.lg0()
    I("s_barrier")
    I(f"ds_read_b128 {quad(T)}, v45 offset:{QS}"); I(f"ds_read_b128 {quad(T+4)}, v45 offset:{QS+16}")
    I(f"s_cmp_lg_u32 {sW}, 0"); I("s_cbranch_scc1 L_noadd")
    I("v_mov_b32 v26, 0"); I("v_mov_b32 v27, 1"); I("s_mov_b64 exec, 1")
    I("global_atomic_add v26, v27, s[26:27] sc1", count=False)
    I("s_mov_b64 exec, -1")
    a.label("L_noadd")
    a.lg0()
    for k in range(4): I(f"v_cvt_pk_bf16_f32 v{9+k}, v{T+2*k}, v{T+2*k+1}")
    stamp(2)
    if dbg == "q":
        I("s_lshl_b32 s100, s2, 13"); I("s_add_u32 s100, s100, 0x1000000"); I("v_add_u32 v45, s100, v2")
        for k in range(4): I(f"v_mov_b32 v{T+k}, v{9+k}")
        I(f"global_store_dwordx4 v45, {quad(T)}, s[28:29]", count=False)

    side = []
    def issue_wo(u):
        t, i = u >> 3, u & 7
        r = (X0 if t == 0 else X1) + 4 * i
        off = (t * 64 + i) * 1024
        if off < 4096: I(f"buffer_load_dwordx4 {quad(r)}, v4, s[44:47], 0 offen offset:{off}{NT}", tag=("wo", u))
        else:
            I(f"s_mov_b32 {sOFF}, {off}")
            I(f"buffer_load_dwordx4 {quad(r)}, v4, s[44:47], {sOFF} offen{NT}", tag=("wo", u))
    def issue_ffn(u):
        m, k = u >> 2, u & 3
        I(f"s_add_u32 m0, s71, {u*1024}")
        srd = ["s[56:59]", "s[60:63]", "s[64:67]"][m]
        off = k * 44032 if m < 2 else k * 8192
        va = "v46" if m < 2 else "v47"
        I(f"s_mov_b32 {sOFF}, {off}")
        I(f"buffer_load_dwordx4 {va}, {srd}, {sOFF} offen{NT} lds", tag=("ffn", u))
    sides = {}
    for u in range(16): sides.setdefault(wo_at + u, []).append(lambda u=u: issue_wo(u))
    for u in range(12): sides.setdefault(ffn_at + u, []).append(lambda u=u: issue_ffn(u))
    def rdy():
        I("v_mov_b32 v26, 0")
        I("global_load_dword v43, v26, s[26:27] sc1", tag="rdy")
    i_k31 = order.index(("K", 31))
    sides.setdefault(i_k31 - 1, []).append(rdy)
    pending_side = [k for k in sorted(sides) if k < NS]
    for k in pending_side:
        for fn in sides.pop(k): fn()
    def issue_more(consumed):
        while issued[0] < 64 and issued[0] < consumed + D and issued[0] - NS < consumed:
            k = issued[0]
            issue_kv()
            for fn in sides.pop(k, []): fn()
    BC = [0, 8, 4, 12]
    perm_steps = [(T, X0, pp, 0) for pp in range(4)] + [(X0, X1, pp, 1) for pp in range(4)]
    def build_A(j):
        c, e = j >> 2, j & 3
        ab = 32 + 4 * (j & 1)
        for r in range(4):
            I(f"v_and_b32_dpp v{ab+r}, v{15+(c&1)}, v{5+r} row_newbcast:{BC[e]} row_mask:0xf bank_mask:0xf")
    for i, (t, j) in enumerate(order):
        s = slot(i)
        c, e = j >> 2, j & 3
        if t == "K":
            a.wait_vm(("kv", i))
            p = 19 + e
            I(f"v_dot2_f32_bf16 v{p}, v{s}, v9, 0")
            for k in range(1, 4): I(f"v_dot2_f32_bf16 v{p}, v{s+k}, v{9+k}, v{p}")
            issue_more(i + 1)
            if e == 1:
                I("v_add_f32_dpp v23, v19, v19 row_ror:8 row_mask:0xf bank_mask:0x3")
                I("v_add_f32_dpp v23, v20, v20 row_ror:8 row_mask:0xf bank_mask:0xc")
            if e == 3:
                I("v_add_f32_dpp v25, v23, v23 row_half_mirror row_mask:0xf bank_mask:0x5")
                I("v_add_f32_dpp v24, v21, v21 row_ror:8 row_mask:0xf bank_mask:0x3")
                I("v_add_f32_dpp v24, v22, v22 row_ror:8 row_mask:0xf bank_mask:0xc")
                I("v_add_f32_dpp v25, v24, v24 row_half_mirror row_mask:0xf bank_mask:0xa")
                I("v_add_f32_dpp v25, v25, v25 quad_perm:[1,0,3,2] row_mask:0xf bank_mask:0xf")
                I("v_add_f32_dpp v25, v25, v25 quad_perm:[2,3,0,1] row_mask:0xf bank_mask:0xf")
                rbf(25, 25)
                I(f"v_mul_f32 v25, {f32(128**-0.5)}, v25")
                rbf(25, 25)
                if dbg == "s":
                    I("s_lshl_b32 s100, s2, 14"); I(f"s_add_u32 s100, s100, {0x1000000 + c*2048}"); I("v_lshlrev_b32 v45, 2, v0"); I("v_add_u32 v45, s100, v45")
                    I(f"global_store_dword v45, v25, s[28:29]", count=False)
                I("v_max_f32_dpp v26, v25, v25 row_ror:4 row_mask:0xf bank_mask:0xf")
                I("v_max_f32_dpp v26, v26, v26 row_ror:8 row_mask:0xf bank_mask:0xf")
                rows_to_sgpr("v_max_f32", 26, "s100")
                if c == 0: I("v_mov_b32 v26, s100")
                else: I("v_max_f32 v26, s100, v13")
                if c == 7:
                    I(f"s_lshl_b32 s100, {sW}, 2"); I("v_mov_b32 v27, s100")
                    I(f"ds_write_b32 v27, v26 offset:{MXS}")
                    I("v_mov_b32 v27, 0")
                    a.lg0(); I("s_barrier")
                    I(f"ds_read_b128 {quad(XF)}, v27 offset:{MXS}"); I(f"ds_read_b128 {quad(XF+4)}, v27 offset:{MXS+16}")
                    a.lg0()
                    I(f"v_max3_f32 v26, v{XF}, v{XF+1}, v{XF+2}"); I(f"v_max3_f32 v27, v{XF+3}, v{XF+4}, v{XF+5}")
                    I(f"v_max3_f32 v26, v26, v{XF+6}, v{XF+7}"); I("v_max_f32 v26, v26, v27")
                I(f"v_mul_f32 v27, {sL2E}, v26")
                I(f"v_fma_f32 v25, v25, {sL2E}, -v27")
                I("v_exp_f32 v25, v25")
                if c == 0:
                    I("v_mov_b32 v14, v25")
                else:
                    al = 17 + (c & 1)
                    I(f"v_fma_f32 v{al}, v13, {sL2E}, -v27")
                    I(f"v_exp_f32 v{al}, v{al}")
                    I(f"v_fma_f32 v14, v14, v{al}, v25")
                I(f"v_cvt_pk_bf16_f32 v{15+(c&1)}, v25, v25")
                I("v_mov_b32 v13, v26")
                if c == 7:
                    I("v_add_f32_dpp v14, v14, v14 row_ror:4 row_mask:0xf bank_mask:0xf")
                    I("v_add_f32_dpp v14, v14, v14 row_ror:8 row_mask:0xf bank_mask:0xf")
                    I("v_add_f32_dpp v14, v14, v14 row_bcast:15 row_mask:0xa bank_mask:0xf")
                    I("v_add_f32_dpp v14, v14, v14 row_bcast:31 row_mask:0xc bank_mask:0xf")
                    I("v_mov_b32 v27, 0")
                    I("s_mov_b32 exec_lo, 0"); I("s_mov_b32 exec_hi, 0x80000000")
                    I(f"ds_add_f32 v27, v14 offset:{LS}")
                    I("s_mov_b64 exec, -1")
                    a.wait_vm("rdy")
                    I(f"s_mov_b32 {sCNT}, 200000")
                    a.fence()
                    a.label("L_rdy")
                    I("v_readfirstlane_b32 s100, v43")
                    I("s_cmp_ge_u32 s100, 256"); I("s_cbranch_scc1 L_rdy_ok")
                    I("global_load_dword v43, v27, s[26:27] sc1", count=False)
                    I(f"s_sub_u32 {sCNT}, {sCNT}, 1"); I("s_cbranch_scc1 L_end")
                    I("s_waitcnt vmcnt(0)")
                    I("s_branch L_rdy")
                    a.label("L_rdy_ok")
                    a.lg0(); I("s_barrier")
                    I(f"s_cmp_lg_u32 {sW}, 0"); I("s_cbranch_scc1 L_noml")
                    I(f"ds_read_b32 v{XF+1}, v27 offset:{LS}")
                    I(f"v_min_u32 v{XF}, -2, v13")
                    I(f"s_lshl_b32 s100, {sB}, 10"); I(f"s_lshl_b32 s101, {sH}, 5"); I("s_add_u32 s100, s100, s101")
                    I(f"s_lshl_b32 s101, {sSP}, 3"); I("s_add_u32 s100, s100, s101"); I(f"s_add_u32 s100, s100, {MLA}")
                    a.lg0()
                    I(f"v_min_u32 v{XF+1}, -2, v{XF+1}")
                    I("s_mov_b64 exec, 1")
                    I(f"buffer_store_dwordx2 v[{XF}:{XF+1}], v27, s[52:55], s100 offen sc1", count=False)
                    I("s_mov_b64 exec, -1")
                    a.label("L_noml")
                    stamp(3)
        else:
            build_A(j)
            if e == 0 and c > 0:
                for r in range(4): I(f"v_mul_f32 v{28+r}, v{28+r}, v{17+(c&1)}")
            a.wait_vm(("kv", i))
            ab = 32 + 4 * (j & 1)
            cc = "0" if j == 0 else quad(28)
            I(f"v_mfma_f32_16x16x32_bf16 {quad(28)}, {quad(ab)}, {quad(s)}, {cc}")
            issue_more(i + 1)
        if i >= perm_at and perm_steps:
            dst, src, pp, tt = perm_steps.pop(0)
            tag = ("wo", tt * 8 + 2 * pp + 1)
            assert tag not in a.vmq or True
            a.wait_vm(tag)
            perm_block(dst, src, [pp])
    assert not perm_steps and not sides, (perm_steps, sides)
    assert not a.vmq, a.vmq
    stamp(4)
    I("v_lshlrev_b32 v45, 5, v42"); I("v_lshl_add_u32 v45, v41, 4, v45")
    I("v_and_b32 v44, 1, v1"); I("v_lshlrev_b32 v44, 7, v44"); I("v_lshl_add_u32 v44, v41, 5, v44")
    I("s_mov_b32 exec_hi, 0")
    for r in range(4): I(f"ds_add_f32 v45, v{28+r} offset:{OS+4*r}")
    I("s_mov_b32 exec_hi, -1")
    I(f"s_lshl_b32 s100, {sH}, 2"); I(f"s_add_u32 s100, s100, {sSP}")
    I("s_and_b32 s101, s100, 7"); I("s_lshl_b32 s101, s101, 4"); I("s_lshr_b32 s100, s100, 3"); I("s_add_u32 s100, s100, s101")
    I("s_lshl_b32 s100, s100, 6")
    I(f"s_lshl_b32 s101, {sB}, 5"); I(f"s_lshl_b32 {sOFF}, {sW}, 2"); I(f"s_add_u32 s101, s101, {sOFF}"); I("s_lshl_b32 s101, s101, 13")
    I(f"s_add_u32 {sOFF}, s100, s101")
    I("v_lshrrev_b32 v43, 1, v42"); I("v_lshlrev_b32 v43, 13, v43")
    I("v_and_b32 v27, 1, v42"); I("v_lshl_add_u32 v43, v27, 5, v43"); I("v_lshl_add_u32 v43, v41, 4, v43")
    a.lg0(); I("s_barrier")
    OA = X1
    for k in range(4): I(f"ds_read_b128 {quad(OA+4*k)}, v44 offset:{OS + (k>>1)*256 + (k&1)*16}")
    ACC = RING
    for t in range(2):
        I(f"s_waitcnt lgkmcnt({2 - 2*t})")
        for k in range(4): I(f"v_cvt_pk_bf16_f32 v{32+4*t+k}, v{OA+8*t+2*k}, v{OA+8*t+2*k+1}")
    for t in range(2):
        B = T if t == 0 else X0
        for j in range(8):
            c = "0" if t == 0 else quad(ACC + 4 * j)
            I(f"v_mfma_f32_16x16x32_bf16 {quad(ACC+4*j)}, {quad(32+4*t)}, {quad(B+4*j)}, {c}")
    for j in range(8):
        I(f"v_add_f32_dpp v{28+(j&3)}, v{ACC+4*j+1}, v{ACC+4*j} row_ror:8 row_mask:0x{1 << (j>>2):x} bank_mask:0xf")
    for r in range(4): I(f"v_min_u32 v{28+r}, -2, v{28+r}")
    I("s_mov_b64 exec, 0x00ff00ff")
    I(f"buffer_store_dwordx4 {quad(28)}, v43, s[52:55], {sOFF} offen sc1")
    I("s_mov_b64 exec, -1")
    stamp(5)
    I(f"s_cmp_lt_u32 s2, {NFFN}"); I("s_cbranch_scc1 L_ffn")
    I("s_sub_u32 s100, s2, 64"); I("s_cmp_ge_u32 s100, 64"); I("s_cbranch_scc1 L_exit")
    I(f"s_cmp_lg_u32 {sW}, 0"); I("s_cbranch_scc1 L_exit")
    a.vmq = []
    I("s_lshr_b32 s101, s100, 5"); I("s_lshl_b32 s101, s101, 10")
    I("s_lshl_b32 s68, s100, 5")
    I("v_and_b32 v27, 3, v1"); I("v_lshlrev_b32 v26, 3, v27"); I("v_lshl_add_u32 v25, v41, 1, v26"); I("v_add_u32 v25, s68, v25")
    I("global_load_ushort v24, v25, s[4:5]")
    I("v_lshrrev_b32 v23, 2, v1"); I("v_lshlrev_b32 v22, 11, v23"); I("v_add_u32 v22, v22, v26")
    I(f"s_add_u32 s68, s68, {HIN}")
    I("v_lshlrev_b32 v23, 6, v23")
    I(f"s_add_u32 s101, s101, {MLA}")
    I("s_lshl_b32 s69, s100, 13")
    I("v_lshlrev_b32 v21, 4, v1")
    I(f"s_mov_b32 {sCNT}, 200000")
    ML = X0
    a.fence(); a.label("L_mlpoll")
    for k in range(4): I(f"buffer_load_dwordx4 {quad(ML+4*k)}, v23, s[52:55], s101 offen offset:{16*k} sc1")
    I(f"s_sub_u32 {sCNT}, {sCNT}, 1"); I("s_cbranch_scc1 L_end")
    a.wait_vm_all()
    I(f"v_max3_u32 v20, v{ML}, v{ML+1}, v{ML+2}")
    for k in range(3, 15, 2): I(f"v_max3_u32 v20, v20, v{ML+k}, v{ML+k+1}")
    I(f"v_max_u32 v20, v20, v{ML+15}")
    I("v_cmp_eq_u32 vcc, -1, v20")
    I("s_cbranch_vccnz L_mlpoll")
    stamp(6)
    ZR = RING
    def zloads():
        for k in range(8):
            if k < 4: I(f"buffer_load_dwordx4 {quad(ZR+4*k)}, v21, s[52:55], s69 offen offset:{1024*k} sc1")
            else: I(f"buffer_load_dwordx4 {quad(ZR+4*k)}, v19, s[52:55], s69 offen offset:{1024*(k-4)} sc1")
    I("v_add_u32 v19, 4096, v21")
    zloads()
    for hh in range(2):
        m = [ML + 8 * hh + 2 * k for k in range(4)]
        I(f"v_max3_f32 v20, v{m[0]}, v{m[1]}, v{m[2]}"); I(f"v_max_f32 v20, v20, v{m[3]}")
        I(f"v_mul_f32 v20, {sL2E}, v20")
        for k in range(4): I(f"v_fma_f32 v{T+4*hh+k}, v{m[k]}, {sL2E}, -v20")
        for k in range(4): I(f"v_exp_f32 v{T+4*hh+k}, v{T+4*hh+k}")
        I(f"v_mul_f32 v20, v{T+4*hh}, v{m[0]+1}")
        for k in range(1, 4): I(f"v_fmac_f32 v20, v{T+4*hh+k}, v{m[k]+1}")
        I("v_rcp_f32 v20, v20")
        for k in range(4): I(f"v_mul_f32 v{T+4*hh+k}, v{T+4*hh+k}, v20")
    I("v_lshlrev_b32 v24, 16, v24")
    I("s_branch L_zchk")
    a.label("L_zpoll")
    zloads()
    I(f"s_sub_u32 {sCNT}, {sCNT}, 1"); I("s_cbranch_scc1 L_end")
    a.label("L_zchk")
    a.wait_vm_all()
    I(f"v_max3_u32 v20, v{ZR}, v{ZR+1}, v{ZR+2}"); I(f"v_max3_u32 v18, v{ZR+3}, v{ZR+4}, v{ZR+5}")
    for k in range(6, 30, 4):
        I(f"v_max3_u32 v20, v20, v{ZR+k}, v{ZR+k+1}"); I(f"v_max3_u32 v18, v18, v{ZR+k+2}, v{ZR+k+3}")
    I(f"v_max3_u32 v20, v20, v{ZR+30}, v{ZR+31}"); I("v_max_u32 v20, v20, v18")
    I("v_cmp_eq_u32 vcc, -1, v20")
    I("s_cbranch_vccnz L_zpoll")
    stamp(7)
    for r in range(4): I(f"v_mul_f32 v{28+r}, v{ZR+r}, v{T}")
    for k in range(1, 8):
        for r in range(4): I(f"v_fmac_f32 v{28+r}, v{ZR+4*k+r}, v{T+k}")
    I("v_permlane16_swap_b32 v28, v29"); I("v_permlane16_swap_b32 v30, v31")
    I("v_add_f32 v28, v28, v29"); I("v_add_f32 v30, v30, v31")
    I("v_permlane32_swap_b32 v28, v30"); I("v_add_f32 v28, v28, v30")
    I("v_add_f32_dpp v28, v28, v28 row_ror:4 row_mask:0xf bank_mask:0xf")
    I("v_add_f32_dpp v28, v28, v28 row_ror:8 row_mask:0xf bank_mask:0xf")
    rbf(28, 28)
    I("v_add_f32 v28, v28, v24")
    I("v_mov_b32 v29, v28")
    I("v_permlane16_swap_b32 v28, v29")
    I("v_cvt_pk_bf16_f32 v28, v28, v29")
    I("v_min_u32 v28, -2, v28")
    I("v_mov_b32 v29, v28")
    I("v_permlane32_swap_b32 v28, v29")
    I("buffer_store_dwordx2 v[28:29], v22, s[52:55], s68 offen sc1")
    stamp(8)
    I("s_branch L_exit")

    a.label("L_ffn", pad=2)
    a.vmq = []
    WA = RING
    WD = RING + 32
    I("v_lshrrev_b32 v27, 2, v42"); I("v_lshl_add_u32 v27, v41, 3, v27")
    I("v_and_b32 v26, 3, v42"); I("v_lshlrev_b32 v26, 3, v26"); I("v_add_u32 v26, s71, v26")
    I("v_lshl_add_u32 v25, v27, 6, v26")
    I("v_lshl_add_u32 v24, v27, 7, v26")
    for t in range(2):
        for tile in range(4):
            for half in range(2):
                r = WA + 16 * t + 4 * tile + 2 * half
                off = (tile >> 1) * 4096 + t * 2048 + half * 256 + (tile & 1) * 32
                I(f"ds_read_b64_tr_b16 v[{r}:{r+1}], v25 offset:{off}")
    a.lg0()
    for tile in range(4):
        for half in range(2):
            r = WD + 4 * tile + 2 * half
            I(f"ds_read_b64_tr_b16 v[{r}:{r+1}], v24 offset:{8192 + half*512 + tile*32}")
    I("v_and_b32 v27, 1, v42")
    I("v_lshlrev_b32 v26, 10, v27"); I("v_lshl_add_u32 v26, v40, 7, v26"); I("v_lshl_add_u32 v26, v41, 4, v26"); I(f"v_add_u32 v26, {LN2}, v26")
    I("v_lshlrev_b32 v25, 6, v27"); I("v_lshl_add_u32 v25, v40, 7, v25"); I("v_lshl_add_u32 v25, v41, 4, v25"); I(f"v_add_u32 v25, {GU}, v25")
    I("v_lshrrev_b32 v24, 1, v42"); I(f"v_mov_b32 v23, {ZERO}")
    for tile in range(4):
        I(f"v_cmp_eq_u32 vcc, {tile}, v24")
        I(f"v_cndmask_b32 v{5+tile}, v23, v26, vcc"); I(f"v_cndmask_b32 v{9+tile}, v23, v25, vcc")
    I("v_bfe_u32 v23, v42, 2, 1"); I("v_lshlrev_b32 v13, 8, v23"); I("v_lshl_add_u32 v13, v27, 7, v13")
    I("v_bfe_u32 v23, v42, 1, 1"); I("v_lshl_add_u32 v13, v23, 6, v13"); I("v_lshl_add_u32 v13, v41, 4, v13")
    I("v_and_b32 v23, 3, v24"); I("v_lshl_add_u32 v23, v40, 2, v23"); I("v_mul_u32_u24 v14, 6144, v23")
    I("v_lshl_add_u32 v14, v27, 6, v14"); I("v_lshl_add_u32 v14, v41, 4, v14")
    I("s_lshl_b32 s68, s2, 7"); I(f"s_add_u32 s68, s68, {YIN}")
    I("v_lshlrev_b32 v15, 2, v1")
    I("v_lshlrev_b32 v16, 1, v0"); I(f"v_add_u32 v16, {GU}, v16")
    I(f"s_cmp_lg_u32 {sW}, 0"); I("s_cbranch_scc1 L_ffn_wait")
    HR, WR, F = X0, X0 + 8, X0 + 16
    I("v_lshrrev_b32 v27, 5, v1"); I("v_and_b32 v26, 31, v1"); I("v_lshlrev_b32 v26, 4, v26")
    I("v_lshl_add_u32 v25, v27, 10, v26")
    I(f"global_load_dwordx4 {quad(WR)}, v26, s[16:17]"); I(f"global_load_dwordx4 {quad(WR+4)}, v26, s[16:17] offset:512")
    I("s_and_b32 s100, s2, 15"); I("s_lshl_b32 s100, s100, 11"); I(f"s_add_u32 s100, s100, {HIN}")
    I(f"s_mov_b32 {sCNT}, 200000")
    a.fence(); a.label("L_hpoll")
    I(f"buffer_load_dwordx4 {quad(HR)}, v25, s[52:55], s100 offen sc1")
    I(f"buffer_load_dwordx4 {quad(HR+4)}, v25, s[52:55], s100 offen offset:512 sc1")
    I(f"s_sub_u32 {sCNT}, {sCNT}, 1"); I("s_cbranch_scc1 L_end")
    a.wait_vm_all()
    I(f"v_max3_u32 v20, v{HR}, v{HR+1}, v{HR+2}"); I(f"v_max3_u32 v21, v{HR+3}, v{HR+4}, v{HR+5}")
    I(f"v_max3_u32 v20, v20, v{HR+6}, v{HR+7}"); I("v_max_u32 v20, v20, v21")
    I("v_cmp_eq_u32 vcc, -1, v20")
    I("s_cbranch_vccnz L_hpoll")
    stamp(6)
    def half_allreduce(v, tmp):
        row_allreduce("v_add_f32", v)
        I(f"v_mov_b32 v{tmp}, v{v}"); I(f"v_permlane16_swap_b32 v{v}, v{tmp}"); I(f"v_add_f32 v{v}, v{v}, v{tmp}")
    unpack(F, HR, 8)
    for k in range(4): I(f"v_add_f32 v{19+k}, v{F+k}, v{F+4+k}")
    for k in range(4): I(f"v_add_f32 v{19+k}, v{19+k}, v{F+8+k}")
    for k in range(4): I(f"v_add_f32 v{19+k}, v{19+k}, v{F+12+k}")
    I("v_add_f32 v19, v19, v20"); I("v_add_f32 v21, v21, v22"); I("v_add_f32 v19, v19, v21")
    half_allreduce(19, 20)
    I(f"v_mul_f32 v23, {f32(1.0/512)}, v19")
    for k in range(16): I(f"v_sub_f32 v{F+k}, v{F+k}, v23")
    for k in range(4): I(f"v_mul_f32 v{19+k}, v{F+k}, v{F+k}")
    for k in range(4, 16): I(f"v_fmac_f32 v{19+(k&3)}, v{F+k}, v{F+k}")
    I("v_add_f32 v19, v19, v20"); I("v_add_f32 v21, v21, v22"); I("v_add_f32 v19, v19, v21")
    half_allreduce(19, 20)
    rbf(23, 23)
    ln_stats_tail(19, 23, 24, 20)
    L2R = X1
    ln_apply(L2R, HR, 8, 23, 24, F)
    I(f"ds_write_b128 v25, {quad(L2R)} offset:{LN2}"); I(f"ds_write_b128 v25, {quad(L2R+4)} offset:{LN2+512}")
    I(f"ds_write_b128 v25, {quad(HR)} offset:{HS}"); I(f"ds_write_b128 v25, {quad(HR+4)} offset:{HS+512}")
    a.label("L_ffn_wait")
    a.lg0(); I("s_barrier")
    BR = T
    for t in range(2):
        for tile in range(4): I(f"ds_read_b128 {quad(BR+16*t+4*tile)}, v{5+tile} offset:{t*64}")
    for u in range(8):
        I(f"s_waitcnt lgkmcnt({7-u})")
        I(f"v_mfma_f32_16x16x32_bf16 {quad(28)}, {quad(WA+4*u)}, {quad(BR+4*u)}, {'0' if u == 0 else quad(28)}")
    I("s_mov_b32 exec_lo, 0x00ff00ff"); I("s_mov_b32 exec_hi, 0x00ff00ff")
    for r in range(4): I(f"ds_add_f32 v13, v{28+r} offset:{GS+4*r}")
    I("s_mov_b64 exec, -1")
    a.lg0(); I("s_barrier")
    I(f"ds_read_b32 v18, v15 offset:{GS}"); I(f"ds_read_b32 v19, v15 offset:{GS+256}")
    I("s_waitcnt lgkmcnt(1)")
    rbf(18, 18)
    I(f"v_mul_f32 v20, {f32(-LOG2E)}, v18"); I("v_exp_f32 v20, v20"); I("v_add_f32 v20, 1.0, v20"); I("v_rcp_f32 v20, v20")
    a.lg0()
    rbf(19, 19)
    I("v_mul_f32 v18, v18, v20")
    rbf(18, 18)
    I("v_mul_f32 v18, v18, v19")
    I("v_cvt_pk_bf16_f32 v18, v18, v18")
    I("ds_write_b16 v16, v18")
    a.lg0()
    for tile in range(4): I(f"ds_read_b128 {quad(BR+4*tile)}, v{9+tile}")
    for u in range(4):
        I(f"s_waitcnt lgkmcnt({3-u})")
        I(f"v_mfma_f32_16x16x32_bf16 {quad(28)}, {quad(WD+4*u)}, {quad(BR+4*u)}, {'0' if u == 0 else quad(28)}")
    for r in range(4): I(f"v_min_u32 v{28+r}, -2, v{28+r}")
    I("s_mov_b32 exec_lo, 0x00ff00ff"); I("s_mov_b32 exec_hi, 0x00ff00ff")
    I(f"buffer_store_dwordx4 {quad(28)}, v14, s[52:55], s68 offen sc1")
    I("s_mov_b64 exec, -1")
    stamp(7)
    I(f"s_cmp_lg_u32 {sW}, 0"); I("s_cbranch_scc1 L_exit")
    I("s_cmp_ge_u32 s2, 32"); I("s_cbranch_scc1 L_exit")
    I("s_mul_i32 s100, s2, 6144"); I(f"s_add_u32 s100, s100, {YIN}")
    I("s_add_u32 s48, s28, s100"); I("s_addc_u32 s49, s29, 0"); I(f"s_mov_b32 s50, {NFFN*128}"); I("s_mov_b32 s51, 0x20000")
    I("v_lshlrev_b32 v21, 4, v1"); I("v_add_u32 v22, 4096, v21")
    YR = RING
    def yloads():
        for k in range(6):
            if k < 4: I(f"buffer_load_dwordx4 {quad(YR+4*k)}, v21, s[48:51], 0 offen offset:{1024*k} sc1")
            else: I(f"buffer_load_dwordx4 {quad(YR+4*k)}, v22, s[48:51], 0 offen offset:{1024*(k-4)} sc1")
    yloads()
    I(f"v_dot2_f32_bf16 v19, v{L2R}, v{WR}, 0")
    for k in range(1, 8): I(f"v_dot2_f32_bf16 v19, v{L2R+k}, v{WR+k}, v19")
    half_allreduce(19, 20)
    rbf(19, 19)
    I(f"v_mul_f32 v20, {f32(-LOG2E)}, v19"); I("v_exp_f32 v20, v20"); I("v_add_f32 v20, 1.0, v20"); I("v_rcp_f32 v20, v20")
    rbf(20, 20)
    I("v_readlane_b32 s100, v20, 0"); I("v_readlane_b32 s101, v20, 32")
    I("v_bfe_u32 v27, v1, 2, 1")
    I("v_cmp_eq_u32 vcc, 1, v27"); I("v_mov_b32 v19, s100"); I("v_mov_b32 v20, s101"); I("v_cndmask_b32 v19, v19, v20, vcc")
    I("v_and_b32 v26, 3, v1"); I("v_lshlrev_b32 v26, 3, v26"); I("v_lshl_add_u32 v26, v41, 1, v26"); I("v_lshl_add_u32 v26, v27, 10, v26")
    I("s_lshl_b32 s100, s2, 5"); I("v_add_u32 v26, s100, v26")
    I(f"ds_read_u16 v24, v26 offset:{LN2}"); I(f"ds_read_u16 v25, v26 offset:{HS}")
    a.lg0()
    I("v_lshlrev_b32 v24, 16, v24"); I("v_lshlrev_b32 v25, 16, v25")
    I(f"s_mov_b32 {sCNT}, 200000")
    I("s_branch L_ychk")
    a.label("L_ypoll")
    yloads()
    I(f"s_sub_u32 {sCNT}, {sCNT}, 1"); I("s_cbranch_scc1 L_end")
    a.label("L_ychk")
    a.wait_vm_all()
    I(f"v_max3_u32 v20, v{YR}, v{YR+1}, v{YR+2}"); I(f"v_max3_u32 v18, v{YR+3}, v{YR+4}, v{YR+5}")
    for k in range(6, 22, 4):
        I(f"v_max3_u32 v20, v20, v{YR+k}, v{YR+k+1}"); I(f"v_max3_u32 v18, v18, v{YR+k+2}, v{YR+k+3}")
    I(f"v_max3_u32 v20, v20, v{YR+22}, v{YR+23}"); I("v_max_u32 v20, v20, v18")
    I("v_cmp_eq_u32 vcc, -1, v20")
    I("s_cbranch_vccnz L_ypoll")
    stamp(8)
    for r in range(4): I(f"v_add_f32 v{28+r}, v{YR+r}, v{YR+4+r}")
    for r in range(4): I(f"v_add_f32 v{32+r}, v{YR+8+r}, v{YR+12+r}")
    for r in range(4): I(f"v_add_f32 v{36+r}, v{YR+16+r}, v{YR+20+r}")
    for r in range(4): I(f"v_add_f32 v{28+r}, v{28+r}, v{32+r}")
    for r in range(4): I(f"v_add_f32 v{28+r}, v{28+r}, v{36+r}")
    I("v_permlane16_swap_b32 v28, v29"); I("v_permlane16_swap_b32 v30, v31")
    I("v_add_f32 v28, v28, v29"); I("v_add_f32 v30, v30, v31")
    I("v_permlane32_swap_b32 v28, v30"); I("v_add_f32 v28, v28, v30")
    I("v_add_f32_dpp v28, v28, v28 row_ror:8 row_mask:0xf bank_mask:0xf")
    rbf(28, 28)
    I("v_mul_f32 v28, v28, v19"); rbf(28, 28)
    I("v_add_f32 v28, v28, v24"); rbf(28, 28)
    I("v_add_f32 v28, v28, v25")
    I("v_cvt_pk_bf16_f32 v28, v28, v28")
    I("s_mov_b32 exec_lo, 0x00ff00ff"); I("s_mov_b32 exec_hi, 0x00ff00ff")
    I("global_store_short v26, v28, s[24:25]")
    I("s_mov_b64 exec, -1")
    if stamps:
        I("s_waitcnt vmcnt(0)")
        stamp(9)
    a.label("L_exit", pad=1)
    if stamps:
        I(f"s_cmp_lg_u32 {sW}, 0"); I("s_cbranch_scc1 L_end")
        a.lg0()
        I("s_lshl_b32 s100, s2, 7"); I("s_add_u32 s100, s100, 0x20000000"); I("v_mov_b32 v26, s100")
        I("s_mov_b64 exec, 1")
        for i in range(10):
            I(f"v_mov_b32 v28, s{80+2*i}"); I(f"v_mov_b32 v29, s{81+2*i}")
            I(f"global_store_dwordx2 v26, v[28:29], s[28:29] offset:{8*i}")
        I("s_getreg_b32 s100, hwreg(HW_REG_XCC_ID)"); I("s_getreg_b32 s101, hwreg(HW_REG_HW_ID)")
        I("v_mov_b32 v28, s100"); I("v_mov_b32 v29, s101")
        I("global_store_dwordx2 v26, v[28:29], s[28:29] offset:120")
        if dbgst:
            I("s_memtime s[100:101]")
            I("v_mov_b32 v26, 0")
            I("s_cmp_eq_u32 s2, 200"); I("s_cbranch_scc1 L_dbg2")
            I("s_cmp_lg_u32 s2, 0"); I("s_cbranch_scc1 L_end")
            a.lg0()
            for i in range(1, 10):
                I(f"s_sub_u32 s{80+2*i}, s{80+2*i}, s80"); I(f"v_mov_b32 v28, s{80+2*i}")
                I(f"global_store_dword v26, v28, s[26:27] offset:{4*i}")
            I("s_sub_u32 s100, s100, s78"); I("v_mov_b32 v28, s100"); I("global_store_dword v26, v28, s[26:27] offset:40")
            I("s_endpgm")
            a.label("L_dbg2")
            for i in range(1, 6):
                I(f"s_sub_u32 s{80+2*i}, s{80+2*i}, s80"); I(f"v_mov_b32 v28, s{80+2*i}")
                I(f"global_store_dword v26, v28, s[26:27] offset:{40+4*i}")
    a.label("L_end")
    I("s_endpgm")
    a.raw('.section .rodata,"a"'); a.raw(".p2align 6"); a.raw(f".amdhsa_kernel {NAME}_kernel")
    for l in ["next_free_vgpr 256", "next_free_sgpr 102", "accum_offset 256", "group_segment_fixed_size 0", "kernarg_size 104",
              "user_sgpr_count 2", "user_sgpr_kernarg_segment_ptr 1", "system_sgpr_workgroup_id_x 1", "float_denorm_mode_32 3"]:
        a.raw("  .amdhsa_" + l)
    a.raw(".end_amdhsa_kernel")
    return a.text()

if __name__ == "__main__":
    import argparse
    ap = argparse.ArgumentParser()
    ap.add_argument("out"); ap.add_argument("--kw", default="")
    x = ap.parse_args()
    kw = eval("dict(" + x.kw + ")")
    open(x.out, "w").write(gen(**kw))
```

```python
import sys, struct
from asmlib import Asm
NAME = "sequential_preLN__sliding_block_cached__moe_arch_mod__decode"
HEADER = open("cdna_kernels/" + NAME + ".s.ref").read().split("; Override launch")[0]

def f32(x): return "0x%08x" % struct.unpack("<I", struct.pack("<f", x))[0]
LOG2E = 1.4426950408889634

ZIN = 0x00000
YIN = 0x80000
HIN = 0xB0000
MLA = 0xC0000
QIA = 0x180000
QIN = 0x100000
WSZ = 0x200000
PART = 0x0000
SCR = 0x1000
ZERO = 0x1800
MLS = 0x1900
NON = 0x1980
LN2, HS = 0x2000, 0x2800
PART2 = 0x3000
FW = 0x4000
LDS_BYTES = FW + 8 * 12288
NFFN = 43
SPIN = 400000

def gen(D=4, stamps=False, nt=True, N0=52, wo_at=8, wo_st=2, ffn_at=13, ffn_st=2, pf=True, n1=4, n2=4, n3=4, n4=4,
        midst=None, x_noffn=False, x_nowo=False, x_even=False, half=False, prost=False, n1b=0, qa='sc1', CAP=64, NPRE=20, catch=4):
    N1 = (256 - N0) // 3
    assert N0 + 3 * N1 == 256 and N0 >= 48
    a = Asm(); I = a.I
    NT = " nt" if nt else ""
    a.raw(HEADER.rstrip("\n"))
    a.raw(f"; @launch grid=(256,1,1) block=(512,1,1) lds={LDS_BYTES}")
    a.raw('.amdgcn_target "amdgcn-amd-amdhsa--gfx950"')
    a.raw(".text"); a.raw(f".globl {NAME}_kernel"); a.raw(".p2align 8")
    a.raw(f".type {NAME}_kernel,@function"); a.raw(f"{NAME}_kernel:")
    KC, VC, G2, G3, G4 = 48, 64, 80, 96, 112
    X0, X1, T = 128, 160, 192
    sH, sB, sSP, sW, sOFF, sCNT, sJ, sHN = "s72", "s73", "s74", "s75", "s76", "s77", "s78", "s79"
    sL2E, sSELLO, sSELHI = "s30", "s31", "s3"
    sF, sFW = "s70", "s71"
    sU0, sU1, sU2, sEND = "s14", "s15", "s68", "s69"
    sN = ["s48", "s49", "s50", "s51"]
    def stamp(i, mid=False):
        if (midst or prost) and i >= 6 and not mid: return
        if stamps: I(f"s_memrealtime s[{80+2*i}:{81+2*i}]")
    def quad(r): return f"v[{r}:{r+3}]"
    def pair(r): return f"v[{r}:{r+1}]"
    def dpp(op, d, s0, s1, ctl, rm="0xf", bm="0xf"):
        I(f"{op}_dpp v{d}, v{s0}, v{s1} {ctl} row_mask:{rm} bank_mask:{bm}")
    def row_allreduce(op, vs):
        for ctl in ["quad_perm:[1,0,3,2]", "quad_perm:[2,3,0,1]", "row_ror:4", "row_ror:8"]:
            for v in vs: dpp(op, v, v, v, ctl)
    def half_allreduce(vs, tmps):
        row_allreduce("v_add_f32", vs)
        for v, t in zip(vs, tmps): I(f"v_mov_b32 v{t}, v{v}")
        for v, t in zip(vs, tmps): I(f"v_permlane16_swap_b32 v{v}, v{t}")
        for v, t in zip(vs, tmps): I(f"v_add_f32 v{v}, v{v}, v{t}")
    def rows_to_sgpr(op, v, s):
        dpp(op, v, v, v, "row_bcast:15", rm="0xa"); dpp(op, v, v, v, "row_bcast:31", rm="0xc")
        I(f"v_readlane_b32 {s}, v{v}, 63")
    def rbf(d, s):
        I(f"v_cvt_pk_bf16_f32 v{d}, v{s}, v{s}"); I(f"v_and_b32 v{d}, 0xffff0000, v{d}")
    def ln_sums(regs, vs, vq, sones):
        for k, r in enumerate(regs):
            I(f"v_dot2_f32_bf16 v{vs}, v{r}, {sones}, {'0' if k == 0 else f'v{vs}'}")
            I(f"v_dot2_f32_bf16 v{vq}, v{r}, v{r}, {'0' if k == 0 else f'v{vq}'}")
    def ln_stats(vs, vq, vm, vrinv, tmp):
        I(f"v_mul_f32 v{vs}, {f32(1.0/512)}, v{vs}")
        I(f"v_mul_f32 v{tmp}, v{vs}, v{vs}")
        I(f"v_fma_f32 v{tmp}, v{vq}, v{tmp+1}, -v{tmp}")
        I(f"v_max_f32 v{tmp}, 0, v{tmp}")
        rbf(vm, vs)
        rbf(tmp, tmp)
        I(f"v_mov_b32 v{vm+1}, v{vm}")
        I(f"v_add_f32 v{tmp}, {f32(1e-5)}, v{tmp}")
        rbf(tmp, tmp)
        I(f"v_sqrt_f32 v{tmp}, v{tmp}")
        rbf(tmp, tmp)
        I(f"v_rcp_f32 v{vrinv}, v{tmp}")
        I(f"v_mov_b32 v{vrinv+1}, v{vrinv}")
    def ln_unpack(F, regs):
        for k, r in enumerate(regs):
            I(f"v_lshlrev_b32 v{F+2*k}, 16, v{r}"); I(f"v_and_b32 v{F+2*k+1}, 0xffff0000, v{r}")
    def ln_apply(dst, F, n, vm, vrinv):
        for k in range(n): I(f"v_pk_add_f32 {pair(F+2*k)}, {pair(F+2*k)}, {pair(vm)} neg_lo:[0,1] neg_hi:[0,1]")
        for k in range(n): I(f"v_cvt_pk_bf16_f32 v{F+2*k+1}, v{F+2*k}, v{F+2*k+1}")
        for k in range(n):
            I(f"v_lshlrev_b32 v{F+2*k}, 16, v{F+2*k+1}"); I(f"v_and_b32 v{F+2*k+1}, 0xffff0000, v{F+2*k+1}")
        for k in range(n): I(f"v_pk_mul_f32 {pair(F+2*k)}, {pair(F+2*k)}, {pair(vrinv)}")
        for k in range(n): I(f"v_cvt_pk_bf16_f32 v{dst+k}, v{F+2*k}, v{F+2*k+1}")
    def perm_block(dst, src, pps=range(4)):
        for pp in pps:
            for c in range(4):
                lo, hi = src + 4 * (2 * pp) + c, src + 4 * (2 * pp + 1) + c
                I(f"v_perm_b32 v{dst + 4*(2*c) + pp}, v{hi}, v{lo}, {sSELLO}")
                I(f"v_perm_b32 v{dst + 4*(2*c+1) + pp}, v{hi}, v{lo}, {sSELHI}")
    def sum8(R):
        for (x, y, n) in [(0, 1, 6), (2, 3, 4), (4, 5, 2), (6, 7, 0)]:
            I(f"s_waitcnt lgkmcnt({n})")
            I(f"v_pk_add_f32 {pair(R+2*x)}, {pair(R+2*x)}, {pair(R+2*y)}")
            if x == 2: I(f"v_pk_add_f32 {pair(R)}, {pair(R)}, {pair(R+4)}")
        I(f"v_pk_add_f32 {pair(R+8)}, {pair(R+8)}, {pair(R+12)}")
        I(f"v_pk_add_f32 {pair(R)}, {pair(R)}, {pair(R+8)}")
    def red8(R, vrd, vwr):
        for w in range(8): I(f"ds_read_b64 {pair(R+2*w)}, v{vrd} offset:{PART + 512*w}")
        sum8(R)
        I(f"v_cvt_pk_bf16_f32 v{R}, v{R}, v{R+1}")
        I(f"ds_write_b32 v{vwr}, v{R}")
        a.lg0()
    def spin(): I(f"s_sub_u32 {sCNT}, {sCNT}, 1"); I("s_cbranch_scc1 L_end")

    a.label("L_start")
    I("s_cmp_ge_u32 s2, 256"); I("s_cbranch_scc1 L_end")
    I("s_load_dwordx16 s[4:19], s[0:1], 0")
    I("s_load_dwordx8 s[20:27], s[0:1], 64")
    I("s_load_dwordx2 s[28:29], s[0:1], 96")
    I("s_memrealtime s[70:71]")
    if stamps:
        for i in range(82, 100): I(f"s_mov_b32 s{i}, 0")
    stamp(0)
    I("v_and_b32 v1, 63, v0")
    I("v_lshrrev_b32 v40, 6, v0")
    if pf:
        I("s_getpc_b64 s[48:49]")
        a.label("L_pc")
        I("s_sub_u32 s48, s48, L_pc-L_start"); I("s_subb_u32 s49, s49, 0")
        I("s_mov_b32 s50, L_codeend-L_start"); I("s_mov_b32 s51, 0x20000")
        I("s_lshr_b32 s100, s2, 3"); I("s_lshl_b32 s100, s100, 10")
        I("v_lshlrev_b32 v45, 7, v40")
        I("buffer_load_dword v236, v45, s[48:51], s100 offen", tag="pf")
    I(f"v_readfirstlane_b32 {sW}, v40")
    I("v_lshlrev_b32 v2, 12, v40"); I("v_lshl_add_u32 v2, v1, 4, v2")
    I(f"s_and_b32 {sH}, s2, 31")
    I(f"s_bfe_u32 {sB}, s2, 0x10005")
    I(f"s_lshr_b32 {sSP}, s2, 6")
    I(f"s_lshr_b32 {sJ}, s2, 5")
    I("v_lshrrev_b32 v41, 4, v1")
    I("v_and_b32 v42, 15, v1")
    I("v_lshrrev_b32 v46, 5, v1"); I("v_and_b32 v47, 31, v1")
    I("v_lshlrev_b32 v46, 10, v46")
    I("v_lshl_add_u32 v43, v47, 4, v46")
    I(f"s_lshl_b32 s100, {sJ}, 7")
    I("v_lshl_add_u32 v44, v47, 2, v46"); I("v_add_u32 v44, s100, v44")
    I("v_lshlrev_b32 v3, 16, v40"); I("v_lshl_add_u32 v3, v41, 13, v3"); I("v_lshl_add_u32 v3, v42, 4, v3")
    I(f"s_mul_i32 s101, {sSP}, {N1}"); I(f"s_add_u32 s101, s101, {N0-N1}")
    I(f"s_cmp_eq_u32 {sSP}, 0"); I("s_cselect_b32 s101, 0, s101"); I(f"s_mov_b32 s34, {N1}"); I(f"s_cselect_b32 s34, {N0}, s34")
    I(f"s_lshl_b32 s38, {sSP}, 6"); I("s_and_b32 s100, s2, 63")
    I(f"s_cmp_lt_u32 s100, {0 if x_even else NFFN}"); I("s_cselect_b32 s101, s101, s38"); I("s_cselect_b32 s34, s34, 64")
    I("s_lshl_b32 s101, s101, 12"); I("s_lshl_b32 s34, s34, 12")
    I("s_lshl_b32 s100, s100, 22")
    I("s_add_u32 s100, s100, s101"); I("s_add_u32 s100, s100, 0x300000")
    I("s_mov_b32 s35, 0x20000"); I("s_mov_b32 s38, s34"); I("s_mov_b32 s39, 0x20000")
    I(f"s_lshl_b32 s101, {sH}, 8"); I(f"s_lshl_b32 {sOFF}, {sJ}, 19"); I(f"s_add_u32 s101, s101, {sOFF}")
    I("s_sub_u32 s42, 0x400000, s101"); I("s_mov_b32 s43, 0x20000")
    I(f"s_lshl_b32 {sOFF}, {sW}, 11"); I(f"s_add_u32 m0, {sOFF}, {FW}")
    a.lg0()
    I(f"s_cmp_lg_u32 {sW}, 7"); I("s_cbranch_scc1 L_nocas")
    I("s_or_b32 s70, s70, 1")
    I("v_mov_b32 v36, -1"); I("v_mov_b32 v38, s70"); I("v_mov_b32 v39, 0"); I(f"s_lshl_b32 {sCNT}, {sH}, 3"); I(f"v_mov_b32 v37, {sCNT}")
    I("s_mov_b64 exec, 1")
    I("global_atomic_cmpswap v36, v37, v[38:39], s[26:27] sc0 sc1", count=False)
    I("s_mov_b64 exec, -1")
    a.label("L_nocas")
    XS = 224; XC = 232
    I(f"global_load_dwordx4 {quad(XS)}, v43, s[4:5]", tag="XS0")
    I("s_add_u32 s40, s10, s101"); I("s_addc_u32 s41, s11, 0")
    I(f"global_load_dwordx4 {quad(XS+4)}, v43, s[4:5] offset:512", tag="XS1")
    I("s_add_u32 s32, s6, s100"); I("s_addc_u32 s33, s7, 0")
    I(f"global_load_dword v{XC}, v44, s[4:5]", tag="XC")
    I("s_add_u32 s36, s8, s100"); I("s_addc_u32 s37, s9, 0")
    I(f"buffer_load_dwordx4 v3, s[40:43], 0 offen{NT} lds", tag="wq0")
    I("s_add_u32 m0, m0, 1024"); I(f"s_mov_b32 {sOFF}, 0x8000")
    I(f"buffer_load_dwordx4 v3, s[40:43], {sOFF} offen{NT} lds", tag="wq1")

    def seq(i):
        if i < 4: return ("K", 0, i)
        it, r = (i - 4) // 8, (i - 4) % 8
        return ("K", it + 1, r >> 1) if r % 2 == 0 else ("V", it, r >> 1)
    def slot(t, u, e):
        base = {("K", 0): G2, ("K", 1): G3, ("V", 0): G4}.get((t, u), KC if t == "K" else VC)
        return base + 4 * e
    issued = [0]
    sides = {}
    paced = [True]
    def issue_kv(n=1):
        for _ in range(n):
            i = issued[0]; t, u, e = seq(i)
            if paced[0] and i >= CAP: a.wait_vm(("kv", i - CAP))
            srd = "s[32:35]" if t == "K" else "s[36:39]"
            if u == 0: so = "0"
            else:
                I(f"s_mov_b32 {sOFF}, {u*32768}"); so = sOFF
            I(f"buffer_load_dwordx4 {quad(slot(t, u, e))}, v2, {srd}, {so} offen offset:{e*1024}{NT}", tag=("kv", i))
            issued[0] += 1
    issue_kv(n1)
    I(f"s_mov_b32 {sL2E}, {f32(LOG2E)}"); I(f"s_mov_b32 {sSELLO}, 0x05040100"); I(f"s_mov_b32 {sSELHI}, 0x07060302")
    I("s_mov_b32 s101, 0x3f803f80")
    I(f"v_mov_b32 v27, {f32(1.0/512)}")
    I("s_mov_b32 s52, s28"); I("s_mov_b32 s53, s29"); I(f"s_mov_b32 s54, {WSZ}"); I("s_mov_b32 s55, 0x20000")
    I("v_lshlrev_b32 v44, 2, v0"); I(f"v_add_u32 v44, {SCR}, v44")
    I("v_and_b32 v45, 1, v1"); I("v_lshlrev_b32 v46, 7, v45"); I("v_lshl_add_u32 v46, v41, 4, v46"); I("v_lshl_add_u32 v46, v40, 8, v46")
    I("v_lshrrev_b32 v47, 2, v42"); I("v_lshl_add_u32 v47, v41, 3, v47"); I("v_lshlrev_b32 v47, 8, v47")
    I("v_lshl_add_u32 v47, v40, 5, v47"); I("v_and_b32 v43, 3, v42"); I("v_lshl_add_u32 v47, v43, 3, v47")
    I("v_lshlrev_b32 v4, 13, v45"); I("v_lshl_add_u32 v4, v40, 7, v4"); I("v_lshl_add_u32 v4, v41, 5, v4")
    a.wait_vm("XS1")
    stamp(1)
    ln_sums([XS + k for k in range(8)], 18, 19, "s101")
    a.wait_vm("XC")
    ln_unpack(T, [XC])
    half_allreduce([18, 19], [20, 21])
    ln_stats(18, 19, 20, 22, 26)
    ln_apply(XC, T, 1, 20, 22)
    I(f"ds_write_b32 v44, v{XC}")
    I(f"s_cmp_lg_u32 {sW}, 7"); I("s_cbranch_scc1 L_nocas2")
    I("v_readfirstlane_b32 s100, v36"); I("s_cmp_lg_u32 s100, -1"); I("s_cbranch_scc1 L_casok")
    I("s_waitcnt vmcnt(0)")
    a.label("L_casok")
    I("v_cmp_eq_u32 vcc, 0, v36"); I("v_cndmask_b32 v36, v36, v38, vcc")
    I("s_mov_b64 exec, 1")
    I(f"ds_write_b32 v39, v36 offset:{NON}")
    I("s_mov_b64 exec, -1")
    a.label("L_nocas2")
    I("v_mov_b32 v39, 0"); I("v_lshlrev_b32 v45, 2, v1")
    I(f"ds_write_b32 v45, v39 offset:{ZERO}")
    issue_kv(n1b)
    a.wait_vm("wq1")
    if prost: stamp(6, True)
    a.lg0(); I("s_barrier")
    if prost: stamp(7, True)
    for t in range(2):
        for hf in range(2): I(f"ds_read_b64_tr_b16 {pair(T+4*t+2*hf)}, v47 offset:{FW + t*8192 + hf*1024}")
    I(f"ds_read_b128 {quad(T+8)}, v46 offset:{SCR}"); I(f"ds_read_b128 {quad(T+12)}, v46 offset:{SCR+64}")
    I(f"ds_read_b32 v34, v39 offset:{NON}")
    I(f"s_lshl_b32 s100, {sH}, 14"); I(f"s_lshl_b32 s101, {sJ}, 10"); I("s_add_u32 s101, s101, s100"); I(f"s_add_u32 s101, s101, {QIN}")
    a.lg0()
    I(f"v_mfma_f32_16x16x32_bf16 {quad(28)}, {quad(T)}, {quad(T+8)}, 0")
    I(f"v_mfma_f32_16x16x32_bf16 {quad(28)}, {quad(T+4)}, {quad(T+12)}, {quad(28)}")
    I(f"v_readfirstlane_b32 {sHN}, v34")
    I("v_mov_b32 v35, v34")
    I(f"s_lshl_b32 {sCNT}, {sB}, 13"); I(f"s_add_u32 s100, s100, {sCNT}"); I(f"s_add_u32 s100, s100, {QIN}")
    I("v_lshlrev_b32 v45, 4, v0")
    I("v_mov_b32 v32, v30"); I("v_mov_b32 v33, v31")
    I("v_mov_b32 v30, v34"); I("v_mov_b32 v31, v34")
    I("s_mov_b32 exec_lo, 0x00030003"); I("s_mov_b32 exec_hi, 0x00030003")
    I(f"s_add_u32 s68, s101, {QIA-QIN}")
    I(f"buffer_store_dwordx4 {quad(28)}, v4, s[52:55], s68 offen")
    I(f"buffer_store_dwordx4 {quad(32)}, v4, s[52:55], s68 offen offset:16")
    I("s_mov_b64 exec, -1")
    I(f"s_add_u32 s69, s100, {QIA-QIN}")
    issue_kv(n2)
    I(f"buffer_load_dwordx4 {quad(XS)}, v45, s[52:55], s69 offen {qa}", tag="qp")
    issue_kv(n3)
    I("v_and_b32 v26, 1, v1"); I("v_lshlrev_b32 v26, 4, v26")
    I("v_mov_b32 v27, 0xffff"); I("v_lshlrev_b32 v27, v26, v27")
    I("v_bfe_u32 v26, v1, 1, 2")
    for r in range(4):
        I(f"v_cmp_eq_u32 vcc, {r}, v26")
        I(f"v_cndmask_b32 v{5+r}, 0, v27, vcc")
    I("v_lshlrev_b32 v43, 3, v1")
    I("v_lshlrev_b32 v26, 3, v0")
    I("v_lshlrev_b32 v27, 8, v40"); I("v_lshl_add_u32 v27, v42, 4, v27")
    I("v_bfe_u32 v25, v1, 3, 1"); I("v_lshlrev_b32 v3, 12, v25"); I("v_lshl_add_u32 v3, v41, 10, v3")
    I("v_lshl_add_u32 v3, v40, 7, v3"); I("v_and_b32 v25, 7, v1"); I("v_lshl_add_u32 v3, v25, 4, v3")
    I(f"s_lshl_b32 s100, {sH}, 17")
    I("s_add_u32 s44, s12, s100"); I("s_addc_u32 s45, s13, 0"); I("s_mov_b32 s46, 0x20000"); I("s_mov_b32 s47, 0x20000")
    I("s_and_b32 s100, s2, 7"); I("s_mul_i32 s101, s100, 5"); I("s_min_u32 s100, s100, 3"); I("s_add_u32 s101, s101, s100")
    I("s_lshr_b32 s100, s2, 3"); I("s_add_u32 s101, s101, s100"); I(f"s_min_u32 {sF}, s101, {NFFN-1}")
    I(f"s_lshl_b32 s100, {sF}, 6")
    I("s_add_u32 s56, s18, s100"); I("s_addc_u32 s57, s19, 0")
    I("s_add_u32 s60, s20, s100"); I("s_addc_u32 s61, s21, 0")
    I(f"s_sub_u32 s101, {512*2752}, s100")
    I(f"s_lshl_b32 s100, {sF}, 15")
    I("s_add_u32 s64, s22, s100"); I("s_addc_u32 s65, s23, 0")
    I(f"s_cmp_lt_u32 s2, {NFFN}")
    I("s_cselect_b32 s58, s101, 0"); I("s_cselect_b32 s62, s101, 0"); I("s_cselect_b32 s66, 0x8000, 0")
    I("s_mov_b32 s59, 0x20000"); I("s_mov_b32 s63, 0x20000"); I("s_mov_b32 s67, 0x20000")
    I("v_lshrrev_b32 v25, 2, v1"); I("v_lshl_add_u32 v25, v40, 6, v25")
    I("v_mul_u32_u24 v46, 2752, v25"); I("v_and_b32 v25, 3, v1"); I("v_lshl_add_u32 v46, v25, 4, v46")
    I("v_lshrrev_b32 v25, 3, v1"); I("v_lshlrev_b32 v47, 10, v25"); I("v_lshl_add_u32 v47, v40, 7, v47")
    I("v_and_b32 v25, 7, v1"); I("v_lshl_add_u32 v47, v25, 4, v47")
    I(f"s_mul_i32 {sFW}, {sW}, 12288"); I(f"s_add_u32 {sFW}, {sFW}, {FW}")
    I(f"s_mov_b32 {sCNT}, {SPIN}")
    a.wait_vm("qp")
    if prost: stamp(8, True)
    I(f"s_sub_u32 s68, s68, {QIA-QIN}")
    I("s_mov_b32 exec_lo, 0x00030003"); I("s_mov_b32 exec_hi, 0x00030003")
    I(f"buffer_store_dwordx4 {quad(28)}, v4, s[52:55], s68 offen sc1")
    I(f"buffer_store_dwordx4 {quad(32)}, v4, s[52:55], s68 offen offset:16 sc1")
    I("s_mov_b64 exec, -1")
    a.label("L_qchk")
    I(f"v_cmp_ne_u32 vcc, {sHN}, v{XS+2}"); I(f"v_cmp_ne_u32 s[100:101], {sHN}, v{XS+3}")
    I("s_or_b64 vcc, vcc, s[100:101]")
    I("s_cbranch_vccz L_qok")
    I(f"s_and_b32 s100, {sCNT}, 3"); I(f"s_cmp_eq_u32 s100, 1"); I(f"s_cselect_b32 s100, {QIA-QIN}, 0"); I("s_sub_u32 s100, s69, s100")
    I(f"buffer_load_dwordx4 {quad(XS)}, v45, s[52:55], s100 offen sc1", count=False)
    spin()
    I("s_waitcnt vmcnt(0)")
    I("s_branch L_qchk")
    a.label("L_qok")
    if prost: stamp(9, True)
    I(f"ds_write_b64 v26, {pair(XS)} offset:{PART}")
    issue_kv(n4)
    I(f"s_lshl_b32 s100, {sW}, 12"); I(f"s_sub_u32 {sEND}, s34, s100")
    a.lg0(); I("s_barrier")
    red8(T, 43, 44)
    Q = 10
    I(f"ds_read_b128 v[10:13], v27 offset:{SCR}")
    issue_kv(NPRE - issued[0])
    paced[0] = False
    a.lg0()
    stamp(2)

    def issue_wo(u):
        t, i = u >> 3, u & 7
        r = (X0 if t == 0 else X1) + 4 * i
        if u == 0: so = "0"
        else:
            I(f"s_mov_b32 {sOFF}, {u*8192}"); so = sOFF
        I(f"buffer_load_dwordx4 {quad(r)}, v3, s[44:47], {so} offen{NT}", tag=("wo", u))
    def issue_ffn(u):
        m, k = u >> 2, u & 3
        I(f"s_add_u32 m0, {sFW}, {u*1024}")
        srd = ["s[56:59]", "s[60:63]", "s[64:67]"][m]
        off = k * 44032 if m < 2 else k * 8192
        va = "v46" if m < 2 else "v47"
        I(f"s_mov_b32 {sOFF}, {off}")
        I(f"buffer_load_dwordx4 {va}, {srd}, {sOFF} offen{NT} lds", tag=("ffn", u))
    def gn():
        I("v_mov_b32 v26, 0")
        I("global_load_dword v9, v26, s[26:27] sc1", tag="gn")
    DK, DV = (D + 1, D) if half else (D, D)
    DM = DV
    for u in range(0 if x_nowo else 16): sides.setdefault(wo_at + wo_st * u, []).append(lambda u=u: issue_wo(u))
    for u in range(0 if x_noffn else 12): sides.setdefault(ffn_at + ffn_st * u, []).append(lambda u=u: issue_ffn(u))
    sides.setdefault(30, []).append(gn)
    perm_steps = [(T, X0, pp, 0) for pp in range(4)] + [(X0, X1, pp, 1) for pp in range(4)]
    BC = [0, 8, 4, 12]
    vM, vL, vPP, vAL, vS = 14, 15, 16, 17, 18
    def build_A(e):
        ab = 32 + 4 * (e & 1)
        for r in range(4): dpp("v_and_b32", ab + r, vPP, 5 + r, f"row_newbcast:{BC[e]}")
    def consume_K(s, e, first, wait, after, prebuild):
        wait()
        p = 19 + e
        I(f"v_dot2_f32_bf16 v{p}, v{s}, v{Q}, 0")
        for k in range(1, 4): I(f"v_dot2_f32_bf16 v{p}, v{s+k}, v{Q+k}, v{p}")
        after()
        if e == 1:
            dpp("v_add_f32", 23, 19, 19, "row_ror:8", bm="0x3"); dpp("v_add_f32", 23, 20, 20, "row_ror:8", bm="0xc")
        if e == 3:
            if prebuild: build_A(3)
            dpp("v_add_f32", vS, 23, 23, "row_half_mirror", bm="0x5")
            dpp("v_add_f32", 24, 21, 21, "row_ror:8", bm="0x3"); dpp("v_add_f32", 24, 22, 22, "row_ror:8", bm="0xc")
            dpp("v_add_f32", vS, 24, 24, "row_half_mirror", bm="0xa")
            dpp("v_add_f32", vS, vS, vS, "quad_perm:[1,0,3,2]"); dpp("v_add_f32", vS, vS, vS, "quad_perm:[2,3,0,1]")
            rbf(vS, vS)
            I(f"v_mul_f32 v{vS}, {f32(128**-0.5)}, v{vS}")
            rbf(vS, vS)
            dpp("v_max_f32", 26, vS, vS, "row_ror:4"); dpp("v_max_f32", 26, 26, 26, "row_ror:8")
            rows_to_sgpr("v_max_f32", 26, "s100")
            if first: I("v_mov_b32 v26, s100")
            else: I(f"v_max_f32 v26, s100, v{vM}")
            I(f"v_mul_f32 v27, {sL2E}, v26")
            I(f"v_fma_f32 v25, v{vS}, {sL2E}, -v27")
            I("v_exp_f32 v25, v25")
            if first: I(f"v_mov_b32 v{vL}, v25")
            else:
                I(f"v_fma_f32 v{vAL}, v{vM}, {sL2E}, -v27")
                I(f"v_exp_f32 v{vAL}, v{vAL}")
                I(f"v_fma_f32 v{vL}, v{vL}, v{vAL}, v25")
            I(f"v_cvt_pk_bf16_f32 v{vPP}, v25, v25")
            I(f"v_mov_b32 v{vM}, v26")
    def consume_V(s, e, first, wait, after, built):
        if not built: build_A(e)
        if e == 0 and not first:
            for r in range(4): I(f"v_mul_f32 v{28+r}, v{28+r}, v{vAL}")
        wait()
        cc = "0" if (first and e == 0) else quad(28)
        I(f"v_mfma_f32_16x16x32_bf16 {quad(28)}, {quad(32 + 4*(e&1))}, {quad(s)}, {cc}")
        after()
    U = 5
    NPOS = 4 + 8 * U
    for i in range(NPOS):
        t, u, e = seq(i)
        def after(i=i, t=t):
            while issued[0] <= i + (DK if t == "K" else DV): issue_kv()
            if catch and i < NPRE - 2 and i % catch == catch - 1 and (issued[0] < 20 or issued[0] - 8 <= i): issue_kv()
            for fn in sides.pop(i, []): fn()
        wait = lambda i=i: a.wait_vm(("kv", i))
        if t == "K": consume_K(slot(t, u, e), e, u == 0, wait, after, prebuild=(u > 0))
        else: consume_V(slot(t, u, e), e, u == 0, wait, after, built=(e == 3))
        if midst and i in midst: stamp(6 + midst.index(i), mid=True)
    assert not sides, sides
    assert a.vmq == [("kv", i) for i in range(NPOS, NPOS + DM)], a.vmq
    I(f"s_mov_b32 {sU0}, {U*32768}"); I(f"s_mov_b32 {sU1}, {(U+1)*32768}"); I(f"s_mov_b32 {sU2}, {(U+2)*32768}")
    I(f"s_cmp_ge_u32 {sU1}, {sEND}"); I("s_cbranch_scc1 L_epi")
    a.fence(); a.label("L_loop")
    a.vmq = [("lp", r) for r in range(DM)]
    lis = [DM]
    def loop_issue():
        r0 = lis[0]; lis[0] += 1
        nxt = r0 >= 8; r = r0 % 8; e = r >> 1
        if r % 2 == 0: I(f"buffer_load_dwordx4 {quad(KC+4*e)}, v2, s[32:35], {sU2 if nxt else sU1} offen offset:{e*1024}{NT}", tag=("lp", r0))
        else: I(f"buffer_load_dwordx4 {quad(VC+4*e)}, v2, s[36:39], {sU1 if nxt else sU0} offen offset:{e*1024}{NT}", tag=("lp", r0))
    for r in range(8):
        e = r >> 1
        wait = lambda r=r: a.wait_vm(("lp", r))
        def after(r=r):
            while lis[0] <= r + (DK if r % 2 == 0 else DV): loop_issue()
        if r % 2 == 0: consume_K(KC + 4 * e, e, False, wait, after, True)
        else: consume_V(VC + 4 * e, e, False, wait, after, built=(e == 3))
    assert a.vmq == [("lp", r) for r in range(8, 8 + DM)], a.vmq
    I(f"s_mov_b32 {sU0}, {sU1}"); I(f"s_mov_b32 {sU1}, {sU2}"); I(f"s_add_u32 {sU2}, {sU2}, 32768")
    a.fence()
    I(f"s_cmp_lt_u32 {sU1}, {sEND}"); I("s_cbranch_scc1 L_loop")
    a.label("L_epi")
    a.vmq = [("ep", r) for r in range(DM)]
    for r in range(DM, 8):
        if r % 2 == 1:
            e = r >> 1
            I(f"buffer_load_dwordx4 {quad(VC+4*e)}, v2, s[36:39], {sU0} offen offset:{e*1024}{NT}", tag=("ep", r))
    dpp("v_add_f32", vL, vL, vL, "row_ror:4"); dpp("v_add_f32", vL, vL, vL, "row_ror:8")
    dpp("v_add_f32", vL, vL, vL, "row_bcast:15", rm="0xa"); dpp("v_add_f32", vL, vL, vL, "row_bcast:31", rm="0xc")
    I("v_lshlrev_b32 v27, 3, v40")
    I("s_mov_b32 exec_lo, 0"); I("s_mov_b32 exec_hi, 0x80000000")
    I(f"ds_write_b64 v27, {pair(vM)} offset:{MLS}")
    I("s_mov_b64 exec, -1")
    I("v_and_b32 v27, 7, v1"); I("v_lshlrev_b32 v27, 3, v27")
    I(f"s_mov_b32 {sCNT}, {SPIN}")
    I("v_mov_b32 v26, 0")
    a.fence(); a.label("L_gn")
    I(f"v_readfirstlane_b32 {sN[0]}, v9")
    I(f"s_cmp_lg_u32 {sN[0]}, 0"); I("s_cbranch_scc1 L_gn_ok")
    I("global_load_dword v9, v26, s[26:27] sc1", count=False)
    spin()
    I("s_waitcnt vmcnt(0)")
    I("s_branch L_gn")
    a.label("L_gn_ok")
    for r in range(1, 4): I(f"s_lshr_b32 {sN[r]}, {sN[0]}, {8*r}")
    for dst, src, pp, tt in perm_steps: perm_block(dst, src, [pp])
    I("v_lshlrev_b32 v45, 9, v40"); I("v_bfe_u32 v25, v1, 3, 1"); I("v_lshl_add_u32 v45, v25, 8, v45"); I("v_lshl_add_u32 v45, v41, 7, v45")
    I("v_and_b32 v25, 7, v1"); I("v_lshl_add_u32 v45, v25, 2, v45")
    I("v_and_b32 v46, 1, v1"); I("v_lshlrev_b32 v46, 6, v46"); I("v_lshl_add_u32 v46, v41, 4, v46"); I("v_lshl_add_u32 v46, v40, 8, v46")
    I(f"s_lshl_b32 s100, {sH}, 2"); I(f"s_add_u32 s100, s100, {sSP}")
    I(f"s_lshl_b32 {sJ}, {sB}, 7"); I(f"s_add_u32 {sJ}, {sJ}, s100"); I(f"s_lshl_b32 {sJ}, {sJ}, 4"); I(f"s_add_u32 {sJ}, {sJ}, {MLA}")
    I(f"s_cmp_eq_u32 {sW}, 7"); I(f"s_cselect_b32 {sJ}, {sJ}, {WSZ}")
    I("s_and_b32 s101, s100, 7"); I("s_lshl_b32 s101, s101, 4"); I("s_lshr_b32 s100, s100, 3"); I("s_add_u32 s100, s100, s101")
    I("s_lshl_b32 s100, s100, 6")
    I(f"s_lshl_b32 s101, {sB}, 5"); I(f"s_lshl_b32 {sOFF}, {sW}, 2"); I(f"s_add_u32 s101, s101, {sOFF}"); I("s_lshl_b32 s101, s101, 13")
    I(f"s_add_u32 {sOFF}, s100, s101")
    I("v_lshrrev_b32 v47, 1, v42"); I("v_lshlrev_b32 v47, 13, v47")
    I("v_and_b32 v25, 1, v42"); I("v_lshl_add_u32 v47, v25, 5, v47"); I("v_lshl_add_u32 v47, v41, 4, v47")
    I("v_mov_b32 v4, 0xff")
    a.lg0(); I("s_barrier")
    I(f"ds_read_b64 v[24:25], v27 offset:{MLS}")
    I("v_mov_b32 v22, v9"); I("v_mov_b32 v23, v9")
    a.lg0()
    dpp("v_max_f32", 20, 24, 24, "quad_perm:[1,0,3,2]"); dpp("v_max_f32", 20, 20, 20, "quad_perm:[2,3,0,1]"); dpp("v_max_f32", 20, 20, 20, "row_half_mirror")
    I(f"v_mul_f32 v27, {sL2E}, v20")
    I(f"v_fma_f32 v24, v24, {sL2E}, -v27"); I(f"v_fma_f32 v19, v{vS}, {sL2E}, -v27"); I(f"v_fma_f32 v27, v{vM}, {sL2E}, -v27")
    I("v_exp_f32 v24, v24"); I("v_exp_f32 v19, v19"); I("v_exp_f32 v27, v27")
    I("v_mul_f32 v21, v24, v25")
    I(f"v_cvt_pk_bf16_f32 v{vPP}, v19, v19")
    I(f"v_mul_f32 v{vAL}, v{vAL}, v27")
    dpp("v_add_f32", 21, 21, 21, "quad_perm:[1,0,3,2]"); dpp("v_add_f32", 21, 21, 21, "quad_perm:[2,3,0,1]"); dpp("v_add_f32", 21, 21, 21, "row_half_mirror")
    I("s_mov_b64 exec, 1")
    I(f"buffer_store_dwordx4 {quad(20)}, v26, s[52:55], {sJ} offen sc1")
    I("s_mov_b64 exec, -1")
    stamp(3)
    for e in range(4):
        consume_V(VC + 4 * e, e, False, lambda e=e: a.wait_vm(("ep", 2 * e + 1)), lambda: None, built=False)
    stamp(4)
    I("s_mov_b32 exec_hi, 0")
    I(f"ds_write2_b32 v45, v28, v29 offset0:{PART//4} offset1:{PART//4+8}"); I(f"ds_write2_b32 v45, v30, v31 offset0:{PART//4+16} offset1:{PART//4+24}")
    I("s_mov_b32 exec_hi, -1")
    a.lg0(); I("s_barrier")
    red8(X1, 43, 44)
    I(f"ds_read_b128 {quad(32)}, v46 offset:{SCR}"); I(f"ds_read_b128 {quad(36)}, v46 offset:{SCR+128}")
    ACC = 48
    for t in range(2):
        B = T if t == 0 else X0
        I(f"s_waitcnt lgkmcnt({1-t})")
        for j in range(8):
            c = "0" if t == 0 else quad(ACC + 4 * j)
            I(f"v_mfma_f32_16x16x32_bf16 {quad(ACC+4*j)}, {quad(32+4*t)}, {quad(B+4*j)}, {c}")
    for j in range(8): dpp("v_add_f32", 28 + (j & 3), ACC + 4 * j + 1, ACC + 4 * j, "row_ror:8", rm=f"0x{1 << (j>>2):x}")
    for r in range(4): I(f"v_bfi_b32 v{28+r}, v4, {sN[r]}, v{28+r}")
    I("s_mov_b64 exec, 0x00ff00ff")
    I(f"buffer_store_dwordx4 {quad(28)}, v47, s[52:55], {sOFF} offen sc1")
    I("s_mov_b64 exec, -1")
    stamp(5)
    I(f"s_cmp_lt_u32 s2, {NFFN}"); I("s_cbranch_scc1 L_ffn")
    I("s_sub_u32 s100, s2, 64"); I("s_cmp_ge_u32 s100, 64"); I("s_cbranch_scc1 L_exit")
    I(f"s_cmp_lg_u32 {sW}, 0"); I("s_cbranch_scc1 L_exit")
    a.vmq = []
    I("s_lshr_b32 s101, s100, 5"); I("s_lshl_b32 s101, s101, 11"); I(f"s_add_u32 s101, s101, {MLA}")
    I("s_lshl_b32 s68, s100, 5")
    I("v_and_b32 v27, 3, v1"); I("v_lshlrev_b32 v26, 3, v27"); I("v_lshl_add_u32 v25, v41, 1, v26"); I("v_add_u32 v25, s68, v25")
    I("global_load_ushort v24, v25, s[4:5]")
    I("v_lshrrev_b32 v23, 2, v1"); I("v_lshlrev_b32 v22, 12, v23"); I("v_lshl_add_u32 v22, v27, 4, v22")
    I("s_lshl_b32 s68, s100, 6"); I(f"s_add_u32 s68, s68, {HIN}")
    I("v_lshlrev_b32 v23, 5, v1")
    I("s_lshl_b32 s69, s100, 13")
    I("v_lshlrev_b32 v21, 4, v1"); I("v_add_u32 v19, 4096, v21")
    I(f"s_mov_b32 {sCNT}, {SPIN}")
    ML = X0
    a.fence(); a.label("L_mlpoll")
    for k in range(2): I(f"buffer_load_dwordx4 {quad(ML+4*k)}, v23, s[52:55], s101 offen offset:{16*k} sc1")
    spin()
    a.wait_vm_all()
    I(f"v_xor_b32 v20, {sN[0]}, v{ML+2}")
    for r in (3, 6, 7): I(f"v_bitop3_b32 v20, v20, v{ML+r}, {sN[0]} bitop3:0xf6")
    I("v_cmp_ne_u32 vcc, 0, v20")
    I("s_cbranch_vccnz L_mlpoll")
    stamp(6)
    ZR = 48
    def zloads():
        for k in range(8):
            I(f"buffer_load_dwordx4 {quad(ZR+4*k)}, v{21 if k < 4 else 19}, s[52:55], s69 offen offset:{1024*(k&3)} sc1", tag=("z", k))
    zloads()
    I(f"v_max_f32 v20, v{ML}, v{ML+4}")
    dpp("v_max_f32", 20, 20, 20, "quad_perm:[1,0,3,2]")
    I(f"v_mul_f32 v20, {sL2E}, v20")
    I(f"v_fma_f32 v{T}, v{ML}, {sL2E}, -v20"); I(f"v_fma_f32 v{T+1}, v{ML+4}, {sL2E}, -v20")
    I(f"v_exp_f32 v{T}, v{T}"); I(f"v_exp_f32 v{T+1}, v{T+1}")
    I(f"v_mul_f32 v20, v{T}, v{ML+1}"); I(f"v_fmac_f32 v20, v{T+1}, v{ML+5}")
    dpp("v_add_f32", 20, 20, 20, "quad_perm:[1,0,3,2]")
    I("v_rcp_f32 v20, v20")
    I(f"v_mul_f32 v{T}, v{T}, v20"); I(f"v_mul_f32 v{T+1}, v{T+1}, v20")
    I("v_lshlrev_b32 v24, 16, v24")
    I("v_mov_b32 v34, v9"); I("v_mov_b32 v35, v9")
    I("s_branch L_zchk")
    a.label("L_zpoll")
    a.vmq = []
    zloads()
    spin()
    a.label("L_zchk", pad=2)
    for k in range(8):
        a.wait_vm(("z", k))
        c = k >> 1
        for r in range(4):
            dpp("v_mul_f32" if k == 0 else "v_fmac_f32", 28 + r, T + (k & 1), ZR + 4 * k + r, f"quad_perm:[{c},{c},{c},{c}]")
        for r in range(4):
            acc = 20 if r < 2 else 18
            if k == 0 and r in (0, 2): I(f"v_xor_b32 v{acc}, {sN[r]}, v{ZR+r}")
            else: I(f"v_bitop3_b32 v{acc}, v{acc}, v{ZR+4*k+r}, {sN[r]} bitop3:0xf6")
    I("v_permlane16_swap_b32 v28, v29"); I("v_permlane16_swap_b32 v30, v31")
    I("v_bitop3_b32 v20, v20, v18, v4 bitop3:0xa8")
    I("v_add_f32 v28, v28, v29"); I("v_add_f32 v30, v30, v31")
    I("v_cmp_ne_u32 vcc, 0, v20")
    I("s_cbranch_vccnz L_zpoll")
    stamp(7)
    I("v_permlane32_swap_b32 v28, v30"); I("v_add_f32 v28, v28, v30")
    dpp("v_add_f32", 28, 28, 28, "row_ror:4"); dpp("v_add_f32", 28, 28, 28, "row_ror:8")
    rbf(28, 28)
    I("v_add_f32 v28, v28, v24")
    I("v_mov_b32 v29, v28")
    I("v_permlane16_swap_b32 v28, v29")
    I("v_cvt_pk_bf16_f32 v32, v28, v29")
    I("v_mov_b32 v33, v32")
    I("v_permlane32_swap_b32 v32, v33")
    I(f"buffer_store_dwordx4 {quad(32)}, v22, s[52:55], s68 offen sc1")
    stamp(8)
    I("s_branch L_exit")

    a.label("L_ffn", pad=2)
    a.vmq = []
    WA = 48; WD = 80
    I("v_lshrrev_b32 v27, 2, v42"); I("v_lshl_add_u32 v27, v41, 3, v27")
    I("v_and_b32 v26, 3, v42"); I("v_lshlrev_b32 v26, 3, v26"); I(f"v_add_u32 v26, {sFW}, v26")
    I("v_lshl_add_u32 v25, v27, 6, v26")
    I("v_lshl_add_u32 v24, v27, 7, v26")
    for t in range(2):
        for tile in range(4):
            for hf in range(2):
                r = WA + 16 * t + 4 * tile + 2 * hf
                off = (tile >> 1) * 4096 + t * 2048 + hf * 256 + (tile & 1) * 32
                I(f"ds_read_b64_tr_b16 v[{r}:{r+1}], v25 offset:{off}")
    a.lg0()
    for tile in range(4):
        for hf in range(2):
            r = WD + 4 * tile + 2 * hf
            I(f"ds_read_b64_tr_b16 v[{r}:{r+1}], v24 offset:{8192 + hf*512 + tile*32}")
    I("v_and_b32 v27, 1, v42")
    I("v_lshlrev_b32 v26, 10, v27"); I("v_lshl_add_u32 v26, v40, 7, v26"); I("v_lshl_add_u32 v26, v41, 4, v26"); I(f"v_add_u32 v26, {LN2}, v26")
    I("v_lshlrev_b32 v25, 6, v27"); I("v_lshl_add_u32 v25, v40, 8, v25"); I("v_lshl_add_u32 v25, v41, 4, v25"); I(f"v_add_u32 v25, {SCR}, v25")
    I("v_lshrrev_b32 v24, 1, v42"); I(f"v_mov_b32 v23, {ZERO}")
    for tile in range(4):
        I(f"v_cmp_eq_u32 vcc, {tile}, v24")
        I(f"v_cndmask_b32 v{5+tile}, v23, v26, vcc"); I(f"v_cndmask_b32 v{9+tile}, v23, v25, vcc")
    I("v_bfe_u32 v23, v42, 2, 1"); I("v_lshlrev_b32 v13, 8, v23"); I("v_lshl_add_u32 v13, v27, 7, v13")
    I("v_bfe_u32 v23, v42, 1, 1"); I("v_lshl_add_u32 v13, v23, 6, v13"); I("v_lshl_add_u32 v13, v41, 4, v13"); I("v_lshl_add_u32 v13, v40, 9, v13")
    I("v_and_b32 v23, 3, v24"); I("v_lshl_add_u32 v23, v40, 2, v23"); I("v_mul_u32_u24 v14, 6144, v23")
    I("v_lshl_add_u32 v14, v27, 6, v14"); I("v_lshl_add_u32 v14, v41, 4, v14")
    I(f"s_lshl_b32 s68, {sF}, 7"); I(f"s_add_u32 s68, s68, {YIN}")
    I("v_lshlrev_b32 v15, 2, v1"); I(f"v_add_u32 v15, {PART2}, v15")
    I("v_lshlrev_b32 v16, 1, v1"); I("v_lshl_add_u32 v16, v40, 8, v16"); I(f"v_add_u32 v16, {SCR}, v16")
    I(f"s_cmp_lg_u32 {sW}, 0"); I("s_cbranch_scc1 L_ffn_wait")
    HR, F = X0, X0 + 16
    WR = X1 + 8
    HL = [HR + 4 * k + i for k in range(4) for i in range(2)]
    I("v_lshrrev_b32 v27, 5, v1"); I("v_and_b32 v26, 31, v1")
    I("v_lshlrev_b32 v25, 4, v26"); I("v_lshl_add_u32 v25, v27, 11, v25")
    I("v_lshlrev_b32 v26, 3, v26")
    I("v_lshl_add_u32 v17, v27, 10, v26")
    for k in range(4): I(f"global_load_dwordx2 {pair(WR+2*k)}, v26, s[16:17] offset:{256*k}")
    I("s_and_b32 s100, s2, 15"); I("s_lshl_b32 s100, s100, 12"); I(f"s_add_u32 s100, s100, {HIN}")
    I(f"s_mov_b32 {sCNT}, {SPIN}")
    I("s_mov_b32 s101, 0x3f803f80"); I(f"v_mov_b32 v33, {f32(1.0/512)}")
    a.fence(); a.label("L_hpoll")
    for k in range(4): I(f"buffer_load_dwordx4 {quad(HR+4*k)}, v25, s[52:55], s100 offen offset:{512*k} sc1")
    spin()
    a.wait_vm_all()
    I(f"v_xor_b32 v20, {sN[0]}, v{HR+2}"); I(f"v_xor_b32 v21, {sN[0]}, v{HR+3}")
    for k in range(1, 4):
        I(f"v_bitop3_b32 v20, v20, v{HR+4*k+2}, {sN[0]} bitop3:0xf6"); I(f"v_bitop3_b32 v21, v21, v{HR+4*k+3}, {sN[0]} bitop3:0xf6")
    I("v_or_b32 v20, v20, v21")
    I("v_cmp_ne_u32 vcc, 0, v20")
    I("s_cbranch_vccnz L_hpoll")
    stamp(6)
    ln_sums(HL, 18, 19, "s101")
    ln_unpack(F, HL)
    half_allreduce([18, 19], [20, 21])
    ln_stats(18, 19, 20, 22, 32)
    L2R = X1
    ln_apply(L2R, F, 8, 20, 22)
    for k in range(4): I(f"ds_write_b64 v17, {pair(L2R+2*k)} offset:{LN2+256*k}")
    a.label("L_ffn_wait")
    a.lg0(); I("s_barrier")
    BR = T
    for t in range(2):
        for tile in range(4): I(f"ds_read_b128 {quad(BR+16*t+4*tile)}, v{5+tile} offset:{t*64}")
    for u in range(8):
        I(f"s_waitcnt lgkmcnt({7-u})")
        I(f"v_mfma_f32_16x16x32_bf16 {quad(28)}, {quad(WA+4*u)}, {quad(BR+4*u)}, {'0' if u == 0 else quad(28)}")
    I("s_mov_b32 exec_lo, 0x00ff00ff"); I("s_mov_b32 exec_hi, 0x00ff00ff")
    I(f"ds_write_b128 v13, {quad(28)} offset:{PART2}")
    I("s_mov_b64 exec, -1")
    a.lg0(); I("s_barrier")
    R = BR
    for w in range(8): I(f"ds_read2st64_b32 {pair(R+2*w)}, v15 offset0:{2*w} offset1:{2*w+1}")
    sum8(R)
    I(f"v_cvt_pk_bf16_f32 v19, v{R}, v{R+1}")
    I("v_lshlrev_b32 v18, 16, v19"); I("v_and_b32 v19, 0xffff0000, v19")
    I(f"v_mul_f32 v20, {f32(-LOG2E)}, v18"); I("v_exp_f32 v20, v20"); I("v_add_f32 v20, 1.0, v20"); I("v_rcp_f32 v20, v20")
    I("v_mul_f32 v18, v18, v20")
    rbf(18, 18)
    I("v_mul_f32 v18, v18, v19")
    I("v_cvt_pk_bf16_f32 v18, v18, v18")
    I("ds_write_b16 v16, v18")
    a.lg0()
    for tile in range(4): I(f"ds_read_b128 {quad(BR+4*tile)}, v{9+tile}")
    for u in range(4):
        I(f"s_waitcnt lgkmcnt({3-u})")
        I(f"v_mfma_f32_16x16x32_bf16 {quad(28)}, {quad(WD+4*u)}, {quad(BR+4*u)}, {'0' if u == 0 else quad(28)}")
    for r in range(4): I(f"v_bfi_b32 v{28+r}, v4, {sN[r]}, v{28+r}")
    I("s_mov_b32 exec_lo, 0x00ff00ff"); I("s_mov_b32 exec_hi, 0x00ff00ff")
    I(f"buffer_store_dwordx4 {quad(28)}, v14, s[52:55], s68 offen sc1")
    I("s_mov_b64 exec, -1")
    stamp(7)
    I(f"s_cmp_lg_u32 {sW}, 0"); I("s_cbranch_scc1 L_exit")
    I("s_cmp_ge_u32 s2, 32"); I("s_cbranch_scc1 L_exit")
    a.vmq = []
    I("s_mul_i32 s100, s2, 6144"); I(f"s_add_u32 s100, s100, {YIN}")
    I("s_add_u32 s44, s28, s100"); I("s_addc_u32 s45, s29, 0"); I(f"s_mov_b32 s46, {NFFN*128}"); I("s_mov_b32 s47, 0x20000")
    I("v_lshlrev_b32 v21, 4, v1"); I("v_add_u32 v22, 4096, v21")
    YR = 48
    def yloads():
        for k in range(6):
            I(f"buffer_load_dwordx4 {quad(YR+4*k)}, v{21 if k < 4 else 22}, s[44:47], 0 offen offset:{1024*(k&3)} sc1", tag=("y", k))
    yloads()
    for k in range(4): I(f"ds_write_b64 v17, {pair(HR+4*k)} offset:{HS+256*k}")
    I(f"v_dot2_f32_bf16 v19, v{L2R}, v{WR}, 0")
    for k in range(1, 8): I(f"v_dot2_f32_bf16 v19, v{L2R+k}, v{WR+k}, v19")
    half_allreduce([19], [20])
    rbf(19, 19)
    I(f"v_mul_f32 v20, {f32(-LOG2E)}, v19"); I("v_exp_f32 v20, v20"); I("v_add_f32 v20, 1.0, v20"); I("v_rcp_f32 v20, v20")
    rbf(20, 20)
    I("v_readlane_b32 s100, v20, 0"); I("v_readlane_b32 s101, v20, 32")
    I("v_bfe_u32 v27, v1, 2, 1")
    I("v_cmp_eq_u32 vcc, 1, v27"); I("v_mov_b32 v19, s100"); I("v_mov_b32 v20, s101"); I("v_cndmask_b32 v19, v19, v20, vcc")
    I("v_and_b32 v26, 3, v1"); I("v_lshlrev_b32 v26, 3, v26"); I("v_lshl_add_u32 v26, v41, 1, v26"); I("v_lshl_add_u32 v26, v27, 10, v26")
    I("s_lshl_b32 s100, s2, 5"); I("v_add_u32 v26, s100, v26")
    a.lg0()
    I(f"ds_read_u16 v24, v26 offset:{LN2}"); I(f"ds_read_u16 v25, v26 offset:{HS}")
    a.lg0()
    I("v_lshlrev_b32 v24, 16, v24"); I("v_lshlrev_b32 v25, 16, v25")
    I(f"s_mov_b32 {sCNT}, {SPIN}")
    I("s_branch L_ychk")
    a.label("L_ypoll")
    a.vmq = []
    yloads()
    spin()
    a.label("L_ychk", pad=2)
    for k in range(6):
        a.wait_vm(("y", k))
        if k == 1:
            for r in (0, 2): I(f"v_pk_add_f32 {pair(28+r)}, {pair(YR+r)}, {pair(YR+4+r)}")
        elif k > 1:
            for r in (0, 2): I(f"v_pk_add_f32 {pair(28+r)}, {pair(28+r)}, {pair(YR+4*k+r)}")
        if k == 5: I("s_mov_b64 exec, 0xffffff")
        for r in range(4):
            acc = 20 if r < 2 else 18
            if k == 0 and r in (0, 2): I(f"v_xor_b32 v{acc}, {sN[r]}, v{YR+r}")
            else: I(f"v_bitop3_b32 v{acc}, v{acc}, v{YR+4*k+r}, {sN[r]} bitop3:0xf6")
        if k == 5: I("s_mov_b64 exec, -1")
    I("v_permlane16_swap_b32 v28, v29"); I("v_permlane16_swap_b32 v30, v31")
    I("v_bitop3_b32 v20, v20, v18, v4 bitop3:0xa8")
    I("v_add_f32 v28, v28, v29"); I("v_add_f32 v30, v30, v31")
    I("v_cmp_ne_u32 vcc, 0, v20")
    I("s_cbranch_vccnz L_ypoll")
    stamp(8)
    I("v_permlane32_swap_b32 v28, v30"); I("v_add_f32 v28, v28, v30")
    dpp("v_add_f32", 28, 28, 28, "row_ror:8")
    rbf(28, 28)
    I("v_mul_f32 v28, v28, v19"); rbf(28, 28)
    I("v_add_f32 v28, v28, v24"); rbf(28, 28)
    I("v_add_f32 v28, v28, v25")
    I("v_cvt_pk_bf16_f32 v28, v28, v28")
    I("s_mov_b32 exec_lo, 0x00ff00ff"); I("s_mov_b32 exec_hi, 0x00ff00ff")
    I("global_store_short v26, v28, s[24:25]")
    I("s_mov_b64 exec, -1")
    if stamps:
        I("s_waitcnt vmcnt(0)")
        stamp(9)
    a.label("L_exit", pad=1)
    if stamps:
        I(f"s_cmp_lg_u32 {sW}, 0"); I("s_cbranch_scc1 L_end")
        a.lg0()
        I("s_lshl_b32 s100, s2, 7"); I("s_add_u32 s100, s100, 0x20000000"); I("v_mov_b32 v26, s100")
        I("s_mov_b64 exec, 1")
        for i in range(10):
            I(f"v_mov_b32 v28, s{80+2*i}"); I(f"v_mov_b32 v29, s{81+2*i}")
            I(f"global_store_dwordx2 v26, v[28:29], s[28:29] offset:{8*i}")
    a.label("L_end")
    I("s_endpgm")
    a.label("L_codeend")
    a.raw('.section .rodata,"a"'); a.raw(".p2align 6"); a.raw(f".amdhsa_kernel {NAME}_kernel")
    for l in ["next_free_vgpr 240", "next_free_sgpr 102", "accum_offset 240", "group_segment_fixed_size 0", "kernarg_size 104",
              "user_sgpr_count 2", "user_sgpr_kernarg_segment_ptr 1", "system_sgpr_workgroup_id_x 1", "float_denorm_mode_32 3"]:
        a.raw("  .amdhsa_" + l)
    a.raw(".end_amdhsa_kernel")
    return a.text()

if __name__ == "__main__":
    import argparse
    ap = argparse.ArgumentParser()
    ap.add_argument("out"); ap.add_argument("--kw", default="")
    x = ap.parse_args()
    kw = eval("dict(" + x.kw + ")")
    open(x.out, "w").write(gen(**kw))
```

```python
import sys, struct
from asmlib import Asm
NAME = "sequential_preLN__sliding_block_cached__moe_arch_mod__decode"
HEADER = open("cdna_kernels/" + NAME + ".s.ref").read().split("; Override launch")[0]

def f32(x): return "0x%08x" % struct.unpack("<I", struct.pack("<f", x))[0]
LOG2E = 1.4426950408889634

ZIN = 0x00000
QIN = 0x80000
MLA = 0x100000
ALT = 0x200000
QIA = QIN + ALT
P2 = 0x110000
YIN = 0x150000
WSZ = 0x400000
PART = 0x0000
SCR = 0x1000
ZERO = 0x1800
MLS = 0x1900
QRDY = 0x1A00
QFLAG = 0x1980
STS = 0x1C00
SCR8 = 0x1B00
LN2, HS = 0x2000, 0x2800
PART2 = 0x3000
FW = 0x4000
LDS_BYTES = FW + 8 * 12288
NFFN = 43
SPIN = 400000

def gen(D=4, stamps=False, nt=True, N0=58, wo_at=12, wo_num=3, wo_den=2, pf=True, CAP=3, NPRE=17, catch=4,
        midst=None, x_noffn=False, x_nowo=False, x_even=False, half=False, prost=False, x_nocomp=False, warm=True, gate=6, stag=6, bar1=False, sync=(), tst=False, ydelay=20, U=5, vl_at=14, earlyv=False, psleep=0, alt_every=32, wst=False, DL=0, prio_at=-1):
    N1 = (256 - N0) // 3
    assert N0 + 3 * N1 == 256 and N0 >= 8 * U + 8
    a = Asm(); I = a.I
    NT = " nt" if nt else ""
    a.raw(HEADER.rstrip("\n"))
    a.raw(f"; @launch grid=(256,1,1) block=(576,1,1) lds={LDS_BYTES}")
    a.raw('.amdgcn_target "amdgcn-amd-amdhsa--gfx950"')
    a.raw(".text"); a.raw(f".globl {NAME}_kernel"); a.raw(".p2align 8")
    a.raw(f".type {NAME}_kernel,@function"); a.raw(f"{NAME}_kernel:")
    KC, VC, G2, G3, G4 = 48, 64, 80, 96, 112
    X0, X1, T = 80, 112, 144
    sH, sB, sSP, sW, sOFF, sCNT, sJ, sHN = "s72", "s73", "s74", "s75", "s76", "s77", "s78", "s79"
    sL2E, sSELLO, sSELHI = "s30", "s31", "s3"
    sF, sFW = "s70", "s71"
    sU0, sU1, sU2, sEND = "s14", "s15", "s68", "s69"
    sN = ["s48", "s49", "s50", "s51"]
    def stamp(i, mid=False):
        if (midst or prost) and i >= 6 and not mid: return
        if wst and i not in (0, 5): return
        if wst and i == 5: i = 9
        if stamps: I(f"s_memrealtime s[{80+2*i}:{81+2*i}]")
    def quad(r): return f"v[{r}:{r+3}]"
    def pair(r): return f"v[{r}:{r+1}]"
    def dpp(op, d, s0, s1, ctl, rm="0xf", bm="0xf"):
        I(f"{op}_dpp v{d}, v{s0}, v{s1} {ctl} row_mask:{rm} bank_mask:{bm}")
    def row_allreduce(op, vs):
        for ctl in ["quad_perm:[1,0,3,2]", "quad_perm:[2,3,0,1]", "row_ror:4", "row_ror:8"]:
            for v in vs: dpp(op, v, v, v, ctl)
    def half_allreduce(vs, tmps):
        row_allreduce("v_add_f32", vs)
        for v, t in zip(vs, tmps): I(f"v_mov_b32 v{t}, v{v}")
        for v, t in zip(vs, tmps): I(f"v_permlane16_swap_b32 v{v}, v{t}")
        for v, t in zip(vs, tmps): I(f"v_add_f32 v{v}, v{v}, v{t}")
    def rows_to_sgpr(op, v, s):
        dpp(op, v, v, v, "row_bcast:15", rm="0xa"); dpp(op, v, v, v, "row_bcast:31", rm="0xc")
        I(f"v_readlane_b32 {s}, v{v}, 63")
    def rbf(d, s):
        I(f"v_cvt_pk_bf16_f32 v{d}, v{s}, v{s}"); I(f"v_and_b32 v{d}, 0xffff0000, v{d}")
    def ln_sums(regs, vs, vq, sones):
        for k, r in enumerate(regs):
            I(f"v_dot2_f32_bf16 v{vs}, v{r}, {sones}, {'0' if k == 0 else f'v{vs}'}")
            I(f"v_dot2_f32_bf16 v{vq}, v{r}, v{r}, {'0' if k == 0 else f'v{vq}'}")
    def ln_stats(vs, vq, vm, vrinv, tmp):
        I(f"v_mul_f32 v{vs}, {f32(1.0/512)}, v{vs}")
        I(f"v_mul_f32 v{tmp}, v{vs}, v{vs}")
        I(f"v_fma_f32 v{tmp}, v{vq}, v{tmp+1}, -v{tmp}")
        I(f"v_max_f32 v{tmp}, 0, v{tmp}")
        rbf(vm, vs)
        rbf(tmp, tmp)
        I(f"v_mov_b32 v{vm+1}, v{vm}")
        I(f"v_add_f32 v{tmp}, {f32(1e-5)}, v{tmp}")
        rbf(tmp, tmp)
        I(f"v_sqrt_f32 v{tmp}, v{tmp}")
        rbf(tmp, tmp)
        I(f"v_rcp_f32 v{vrinv}, v{tmp}")
        I(f"v_mov_b32 v{vrinv+1}, v{vrinv}")
    def ln_unpack(F, regs):
        for k, r in enumerate(regs):
            I(f"v_lshlrev_b32 v{F+2*k}, 16, v{r}"); I(f"v_and_b32 v{F+2*k+1}, 0xffff0000, v{r}")
    def ln_apply(dst, F, n, vm, vrinv):
        for k in range(n): I(f"v_pk_add_f32 {pair(F+2*k)}, {pair(F+2*k)}, {pair(vm)} neg_lo:[0,1] neg_hi:[0,1]")
        for k in range(n): I(f"v_cvt_pk_bf16_f32 v{F+2*k+1}, v{F+2*k}, v{F+2*k+1}")
        for k in range(n):
            I(f"v_lshlrev_b32 v{F+2*k}, 16, v{F+2*k+1}"); I(f"v_and_b32 v{F+2*k+1}, 0xffff0000, v{F+2*k+1}")
        for k in range(n): I(f"v_pk_mul_f32 {pair(F+2*k)}, {pair(F+2*k)}, {pair(vrinv)}")
        for k in range(n): I(f"v_cvt_pk_bf16_f32 v{dst+k}, v{F+2*k}, v{F+2*k+1}")
    def perm_inplace(X, t0, t1):
        def lohi(pp, c): return X + 4 * (2 * pp) + c, X + 4 * (2 * pp + 1) + c
        for pp in range(4):
            lo, hi = lohi(pp, pp)
            I(f"v_perm_b32 v{t0}, v{hi}, v{lo}, {sSELLO}"); I(f"v_perm_b32 v{hi}, v{hi}, v{lo}, {sSELHI}"); I(f"v_mov_b32 v{lo}, v{t0}")
            for c in range(pp + 1, 4):
                lo, hi = lohi(pp, c); lo2, hi2 = lohi(c, pp)
                I(f"v_perm_b32 v{t0}, v{hi}, v{lo}, {sSELLO}"); I(f"v_perm_b32 v{t1}, v{hi}, v{lo}, {sSELHI}")
                I(f"v_perm_b32 v{lo}, v{hi2}, v{lo2}, {sSELLO}"); I(f"v_perm_b32 v{hi}, v{hi2}, v{lo2}, {sSELHI}")
                I(f"v_mov_b32 v{lo2}, v{t0}"); I(f"v_mov_b32 v{hi2}, v{t1}")
    def sum8(R):
        for (x, y, n) in [(0, 1, 6), (2, 3, 4), (4, 5, 2), (6, 7, 0)]:
            I(f"s_waitcnt lgkmcnt({n})")
            I(f"v_pk_add_f32 {pair(R+2*x)}, {pair(R+2*x)}, {pair(R+2*y)}")
            if x == 2: I(f"v_pk_add_f32 {pair(R)}, {pair(R)}, {pair(R+4)}")
        I(f"v_pk_add_f32 {pair(R+8)}, {pair(R+8)}, {pair(R+12)}")
        I(f"v_pk_add_f32 {pair(R)}, {pair(R)}, {pair(R+8)}")
    def red8(R, vrd, vwr):
        for w in range(8): I(f"ds_read_b64 {pair(R+2*w)}, v{vrd} offset:{PART + 512*w}")
        sum8(R)
        I(f"v_cvt_pk_bf16_f32 v{R}, v{R}, v{R+1}")
        I(f"ds_write_b32 v{vwr}, v{R}")
        a.lg0()
    def spin(): I(f"s_sub_u32 {sCNT}, {sCNT}, 1"); I("s_cbranch_scc1 L_end")

    a.label("L_start")
    I("s_cmp_ge_u32 s2, 256"); I("s_cbranch_scc1 L_end")
    I("s_load_dwordx16 s[4:19], s[0:1], 0")
    I("s_load_dwordx8 s[20:27], s[0:1], 64")
    I("s_load_dwordx2 s[28:29], s[0:1], 96")
    I("s_memrealtime s[70:71]")
    if stamps:
        for i in range(82, 100): I(f"s_mov_b32 s{i}, 0")
    stamp(0)
    I("v_and_b32 v1, 63, v0")
    I("v_lshrrev_b32 v40, 6, v0")
    if pf:
        I("s_getpc_b64 s[48:49]")
        a.label("L_pc")
        I("s_sub_u32 s48, s48, L_pc-L_start"); I("s_subb_u32 s49, s49, 0")
        I("s_mov_b32 s50, L_codeend-L_start"); I("s_mov_b32 s51, 0x20000")
        I("s_lshr_b32 s100, s2, 3"); I("s_lshl_b32 s100, s100, 10")
        I("v_lshlrev_b32 v45, 7, v40")
        I("buffer_load_dword v167, v45, s[48:51], s100 offen", tag="pf")
    I(f"v_readfirstlane_b32 {sW}, v40")
    I("v_lshlrev_b32 v2, 12, v40"); I("v_lshl_add_u32 v2, v1, 4, v2")
    I(f"s_and_b32 {sH}, s2, 31")
    I(f"s_bfe_u32 {sB}, s2, 0x10005")
    I(f"s_lshr_b32 {sSP}, s2, 6")
    I(f"s_lshr_b32 {sJ}, s2, 5")
    I("v_lshrrev_b32 v41, 4, v1")
    I("v_and_b32 v42, 15, v1")
    I(f"s_cmp_eq_u32 {sW}, 8"); I("s_cbranch_scc1 L_svc")
    I(f"s_mul_i32 s101, {sSP}, {N1}"); I(f"s_add_u32 s101, s101, {N0-N1}")
    I(f"s_cmp_eq_u32 {sSP}, 0"); I("s_cselect_b32 s101, 0, s101"); I(f"s_mov_b32 s34, {N1}"); I(f"s_cselect_b32 s34, {N0}, s34")
    I(f"s_lshl_b32 s38, {sSP}, 6"); I("s_and_b32 s100, s2, 63")
    I(f"s_cmp_lt_u32 s100, {0 if x_even else NFFN}"); I("s_cselect_b32 s101, s101, s38"); I("s_cselect_b32 s34, s34, 64")
    I("s_lshl_b32 s101, s101, 12"); I("s_lshl_b32 s34, s34, 12")
    I("s_lshl_b32 s100, s100, 22")
    I("s_add_u32 s100, s100, s101"); I("s_add_u32 s100, s100, 0x300000")
    I("s_mov_b32 s35, 0x20000"); I("s_mov_b32 s38, s34"); I("s_mov_b32 s39, 0x20000")
    a.lg0()
    I("s_add_u32 s32, s6, s100"); I("s_addc_u32 s33, s7, 0")
    I("s_add_u32 s36, s8, s100"); I("s_addc_u32 s37, s9, 0")

    def seq(i):
        if i < 4: return ("K", 0, i)
        it, r = (i - 4) // 8, (i - 4) % 8
        return ("K", it + 1, r >> 1) if r % 2 == 0 else ("V", it, r >> 1)
    def slot(t, u, e):
        base = {("K", 0): G2, ("K", 1): G3, ("V", 0): G4}.get((t, u), KC if t == "K" else VC)
        return base + 4 * e
    issued = [0]
    sides = {}
    paced = [True]
    def issue_kv(n=1):
        for _ in range(n):
            i = issued[0]; t, u, e = seq(i)
            if paced[0] and i >= CAP: a.wait_vm(("kv", i - CAP))
            srd = "s[32:35]" if t == "K" else "s[36:39]"
            if u == 0: so = "0"
            else:
                I(f"s_mov_b32 {sOFF}, {u*32768}"); so = sOFF
            I(f"buffer_load_dwordx4 {quad(slot(t, u, e))}, v2, {srd}, {so} offen offset:{e*1024}{NT}", tag=("kv", i))
            issued[0] += 1
    issue_kv(CAP)
    I("s_barrier")
    I(f"s_mov_b32 {sL2E}, {f32(LOG2E)}"); I(f"s_mov_b32 {sSELLO}, 0x05040100"); I(f"s_mov_b32 {sSELHI}, 0x07060302")
    I("s_mov_b32 s52, s28"); I("s_mov_b32 s53, s29"); I(f"s_mov_b32 s54, {WSZ}"); I("s_mov_b32 s55, 0x20000")
    I("v_lshlrev_b32 v44, 2, v0"); I(f"v_add_u32 v44, {SCR}, v44")
    I("v_and_b32 v26, 1, v1"); I("v_lshlrev_b32 v26, 4, v26")
    I("v_mov_b32 v27, 0xffff"); I("v_lshlrev_b32 v27, v26, v27")
    I("v_bfe_u32 v26, v1, 1, 2")
    for r in range(4):
        I(f"v_cmp_eq_u32 vcc, {r}, v26")
        I(f"v_cndmask_b32 v{5+r}, 0, v27, vcc")
    I("v_lshlrev_b32 v43, 3, v1")
    I("v_lshlrev_b32 v27, 4, v42")
    I("v_bfe_u32 v25, v1, 3, 1"); I("v_lshlrev_b32 v3, 12, v25"); I("v_lshl_add_u32 v3, v41, 10, v3")
    I("v_lshl_add_u32 v3, v40, 7, v3"); I("v_and_b32 v25, 7, v1"); I("v_lshl_add_u32 v3, v25, 4, v3")
    I(f"s_lshl_b32 s100, {sH}, 17")
    I("s_add_u32 s44, s12, s100"); I("s_addc_u32 s45, s13, 0"); I("s_mov_b32 s46, 0x20000"); I("s_mov_b32 s47, 0x20000")
    I(f"s_lshl_b32 s100, {sW}, 12"); I(f"s_sub_u32 {sEND}, s34, s100")
    issue_kv(NPRE - issued[0])
    paced[0] = False
    stamp(1)
    Q = 10
    I("v_mov_b32 v26, 0"); I(f"s_mov_b32 {sCNT}, {SPIN*8}")
    a.label("L_qwait")
    I(f"ds_read_b32 v25, v26 offset:{QFLAG}")
    I(f"ds_read_b128 v[10:13], v27 offset:{QRDY}")
    spin()
    a.lg0()
    I("v_readfirstlane_b32 s100, v25")
    I("s_cmp_eq_u32 s100, 0"); I("s_cbranch_scc1 L_qwait")
    if bar1: I("s_barrier")
    stamp(2)

    def issue_wo(u):
        t, i = u >> 3, u & 7
        r = (X0 if t == 0 else X1) + 4 * i
        if u == 0: so = "0"
        else:
            I(f"s_mov_b32 {sOFF}, {u*8192}"); so = sOFF
        I(f"buffer_load_dwordx4 {quad(r)}, v3, s[44:47], {so} offen{NT}", tag=("wo", u))
    def gn():
        I("v_mov_b32 v26, 0")
        I("global_load_dword v9, v26, s[26:27] sc1", tag="gn")
    DK, DV = (D + 1, D) if half else (D, D)
    DM = DV
    assert wo_at >= 12
    for u in range(0 if x_nowo else 16): sides.setdefault(wo_at + (wo_num * u) // wo_den, []).append(lambda u=u: issue_wo(u))
    sides.setdefault(30, []).append(gn)
    def issue_vl(e):
        I(f"buffer_load_dwordx4 {quad(T+4*e)}, v2, s[36:39], {sU2} offen offset:{e*1024}{NT}", tag=("vl", e))
        if e == 3: I(f"s_lshl_b32 s100, {sW}, 12"); I(f"s_add_u32 s38, {sU2}, s100")
    if earlyv:
        I(f"s_sub_u32 {sU2}, {sEND}, 1"); I(f"s_and_b32 {sU2}, {sU2}, 0xffff8000")
        for e in range(4): sides.setdefault(vl_at + 2 * e, []).append(lambda e=e: issue_vl(e))
    BC = [0, 8, 4, 12]
    vM, vL, vPP, vAL, vS = 14, 15, 16, 17, 18
    def build_A(e):
        ab = 32 + 4 * (e & 1)
        for r in range(4): dpp("v_and_b32", ab + r, vPP, 5 + r, f"row_newbcast:{BC[e]}")
    def consume_K(s, e, first, wait, after, prebuild):
        wait()
        if x_nocomp:
            I(f"v_xor_b32 v19, v19, v{s}"); after(); return
        p = 19 + e
        I(f"v_dot2_f32_bf16 v{p}, v{s}, v{Q}, 0")
        for k in range(1, 4): I(f"v_dot2_f32_bf16 v{p}, v{s+k}, v{Q+k}, v{p}")
        after()
        if e == 1:
            dpp("v_add_f32", 23, 19, 19, "row_ror:8", bm="0x3"); dpp("v_add_f32", 23, 20, 20, "row_ror:8", bm="0xc")
        if e == 3:
            if prebuild: build_A(3)
            dpp("v_add_f32", vS, 23, 23, "row_half_mirror", bm="0x5")
            dpp("v_add_f32", 24, 21, 21, "row_ror:8", bm="0x3"); dpp("v_add_f32", 24, 22, 22, "row_ror:8", bm="0xc")
            dpp("v_add_f32", vS, 24, 24, "row_half_mirror", bm="0xa")
            dpp("v_add_f32", vS, vS, vS, "quad_perm:[1,0,3,2]"); dpp("v_add_f32", vS, vS, vS, "quad_perm:[2,3,0,1]")
            rbf(vS, vS)
            I(f"v_mul_f32 v{vS}, {f32(128**-0.5)}, v{vS}")
            rbf(vS, vS)
            dpp("v_max_f32", 26, vS, vS, "row_ror:4"); dpp("v_max_f32", 26, 26, 26, "row_ror:8")
            rows_to_sgpr("v_max_f32", 26, "s100")
            if first: I("v_mov_b32 v26, s100")
            else: I(f"v_max_f32 v26, s100, v{vM}")
            I(f"v_mul_f32 v27, {sL2E}, v26")
            I(f"v_fma_f32 v25, v{vS}, {sL2E}, -v27")
            I("v_exp_f32 v25, v25")
            if first: I(f"v_mov_b32 v{vL}, v25")
            else:
                I(f"v_fma_f32 v{vAL}, v{vM}, {sL2E}, -v27")
                I(f"v_exp_f32 v{vAL}, v{vAL}")
                I(f"v_fma_f32 v{vL}, v{vL}, v{vAL}, v25")
            I(f"v_cvt_pk_bf16_f32 v{vPP}, v25, v25")
            I(f"v_mov_b32 v{vM}, v26")
    def consume_V(s, e, first, wait, after, built):
        if x_nocomp:
            wait(); I(f"v_xor_b32 v19, v19, v{s}"); after(); return
        if not built: build_A(e)
        if e == 0 and not first:
            for r in range(4): I(f"v_mul_f32 v{28+r}, v{28+r}, v{vAL}")
        wait()
        cc = "0" if (first and e == 0) else quad(28)
        I(f"v_mfma_f32_16x16x32_bf16 {quad(28)}, {quad(32 + 4*(e&1))}, {quad(s)}, {cc}")
        after()
    NPOS = 4 + 8 * U
    for i in range(NPOS):
        t, u, e = seq(i)
        def after(i=i, t=t):
            while issued[0] <= i + (DK if t == "K" else DV): issue_kv()
            if catch and i < NPRE - 2 and i % catch == catch - 1 and (issued[0] < 20 or issued[0] - 8 <= i): issue_kv()
            for fn in sides.pop(i, []): fn()
        wait = lambda i=i: a.wait_vm(("kv", i))
        if t == "K": consume_K(slot(t, u, e), e, u == 0, wait, after, prebuild=(u > 0))
        else: consume_V(slot(t, u, e), e, u == 0, wait, after, built=(e == 3))
        if midst and i in midst: stamp(6 + midst.index(i), mid=True)
        if i in sync: I("s_barrier")
        if i == prio_at:
            I(f"s_cmp_lt_u32 {sW}, 4"); I("s_cbranch_scc1 L_noprio"); I("s_setprio 1"); a.label("L_noprio")
    assert not sides, sides
    assert a.vmq == [("kv", i) for i in range(NPOS, NPOS + DM)], a.vmq
    if DL:
        issue_kv(DL - DM); DK = DV = DM = DL
    perm_inplace(X0, 160, 161); perm_inplace(X1, 160, 161)
    I(f"s_mov_b32 {sCNT}, {SPIN}")
    I("v_mov_b32 v3, 0")
    a.fence(); a.label("L_gn")
    I(f"v_readfirstlane_b32 {sN[0]}, v9")
    I(f"s_cmp_lg_u32 {sN[0]}, 0"); I("s_cbranch_scc1 L_gn_ok")
    I("global_load_dword v9, v3, s[26:27] sc1", count=False)
    spin()
    I("s_waitcnt vmcnt(0)")
    I("s_branch L_gn")
    a.label("L_gn_ok")
    for r in range(1, 4): I(f"s_lshr_b32 {sN[r]}, {sN[0]}, {8*r}")
    I("v_lshlrev_b32 v45, 9, v40"); I("v_bfe_u32 v25, v1, 3, 1"); I("v_lshl_add_u32 v45, v25, 8, v45"); I("v_lshl_add_u32 v45, v41, 7, v45")
    I("v_and_b32 v25, 7, v1"); I("v_lshl_add_u32 v45, v25, 2, v45")
    I("v_and_b32 v46, 1, v1"); I("v_lshlrev_b32 v46, 6, v46"); I("v_lshl_add_u32 v46, v41, 4, v46"); I("v_lshl_add_u32 v46, v40, 8, v46")
    I(f"s_lshr_b32 s100, {sH}, 3"); I("s_lshl_b32 s100, s100, 2"); I(f"s_add_u32 s100, s100, {sSP}")
    I("s_and_b32 s101, s2, 7"); I("s_lshl_b32 s101, s101, 1"); I(f"s_add_u32 s101, s101, {sB}")
    I(f"s_lshl_b32 {sJ}, s101, 4"); I(f"s_add_u32 {sJ}, {sJ}, s100"); I(f"s_lshl_b32 {sJ}, {sJ}, 4"); I(f"s_add_u32 {sJ}, {sJ}, {MLA}")
    I(f"s_cmp_eq_u32 {sW}, 7"); I(f"s_cselect_b32 {sJ}, {sJ}, {WSZ}")
    I(f"s_add_u32 {sHN}, {sJ}, {ALT}")
    I("s_lshl_b32 s101, s101, 15")
    I("s_and_b32 s42, s100, 1"); I("s_lshl_b32 s42, s42, 3"); I("s_lshr_b32 s100, s100, 1"); I("s_add_u32 s100, s100, s42"); I("s_lshl_b32 s100, s100, 7")
    I("s_add_u32 s101, s101, s100"); I(f"s_lshl_b32 s100, {sW}, 12"); I("s_add_u32 s42, s101, s100")
    I(f"s_add_u32 s43, s42, {ALT}")
    I("v_bfe_u32 v47, v42, 2, 1"); I("v_lshlrev_b32 v47, 11, v47")
    I("v_and_b32 v25, 3, v42"); I("v_lshl_add_u32 v47, v25, 5, v47"); I("v_lshl_add_u32 v47, v41, 4, v47")
    I("v_mov_b32 v4, 0xff")
    I(f"s_mov_b32 {sU0}, {U*32768}"); I(f"s_mov_b32 {sU1}, {(U+1)*32768}"); I(f"s_mov_b32 {sU2}, {(U+2)*32768}")
    I(f"s_cmp_ge_u32 {sU1}, {sEND}"); I("s_cbranch_scc1 L_epi")
    a.fence(); a.label("L_loop")
    a.vmq = [("lp", r) for r in range(DM)]
    lis = [DM]
    def loop_issue():
        r0 = lis[0]; lis[0] += 1
        nxt = r0 >= 8; r = r0 % 8; e = r >> 1
        if r % 2 == 0: I(f"buffer_load_dwordx4 {quad(KC+4*e)}, v2, s[32:35], {sU2 if nxt else sU1} offen offset:{e*1024}{NT}", tag=("lp", r0))
        else: I(f"buffer_load_dwordx4 {quad(VC+4*e)}, v2, s[36:39], {sU1 if nxt else sU0} offen offset:{e*1024}{NT}", tag=("lp", r0))
    for r in range(8):
        e = r >> 1
        wait = lambda r=r: a.wait_vm(("lp", r))
        def after(r=r):
            while lis[0] <= r + (DK if r % 2 == 0 else DV): loop_issue()
        if r % 2 == 0: consume_K(KC + 4 * e, e, False, wait, after, True)
        else: consume_V(VC + 4 * e, e, False, wait, after, built=(e == 3))
    assert a.vmq == [("lp", r) for r in range(8, 8 + DM)], a.vmq
    I(f"s_mov_b32 {sU0}, {sU1}"); I(f"s_mov_b32 {sU1}, {sU2}"); I(f"s_add_u32 {sU2}, {sU2}, 32768")
    a.fence()
    I(f"s_cmp_lt_u32 {sU1}, {sEND}"); I("s_cbranch_scc1 L_loop")
    a.label("L_epi")
    if wst:
        I("s_memrealtime s[98:99]"); a.lg0()
        I("s_lshl_b32 s100, s2, 7"); I(f"s_lshl_b32 s101, {sW}, 3"); I("s_add_u32 s100, s100, s101"); I("s_add_u32 s100, s100, 0x20000008")
        I("v_mov_b32 v162, s100"); I("v_mov_b32 v164, s98"); I("v_mov_b32 v165, s99"); I("s_mov_b64 exec, 1")
        I("global_store_dwordx2 v162, v[164:165], s[28:29]", count=False)
        I("s_mov_b64 exec, -1")
    a.vmq = [("ep", r) for r in range(DM)]
    for r in range(DM, 8):
        if r % 2 == 1 and not earlyv:
            e = r >> 1
            I(f"buffer_load_dwordx4 {quad(VC+4*e)}, v2, s[36:39], {sU0} offen offset:{e*1024}{NT}", tag=("ep", r))
    dpp("v_add_f32", vL, vL, vL, "row_ror:4"); dpp("v_add_f32", vL, vL, vL, "row_ror:8")
    dpp("v_add_f32", vL, vL, vL, "row_bcast:15", rm="0xa"); dpp("v_add_f32", vL, vL, vL, "row_bcast:31", rm="0xc")
    I("v_lshlrev_b32 v27, 3, v40")
    I("s_mov_b32 exec_lo, 0"); I("s_mov_b32 exec_hi, 0x80000000")
    I(f"ds_write_b64 v27, {pair(vM)} offset:{MLS}")
    I("s_mov_b64 exec, -1")
    I("v_and_b32 v27, 7, v1"); I("v_lshlrev_b32 v27, 3, v27")
    a.lg0(); I("s_barrier")
    I(f"ds_read_b64 v[24:25], v27 offset:{MLS}")
    I("v_mov_b32 v22, v9"); I("v_mov_b32 v23, v9")
    a.lg0()
    dpp("v_max_f32", 20, 24, 24, "quad_perm:[1,0,3,2]"); dpp("v_max_f32", 20, 20, 20, "quad_perm:[2,3,0,1]"); dpp("v_max_f32", 20, 20, 20, "row_half_mirror")
    I(f"v_mul_f32 v27, {sL2E}, v20")
    I(f"v_fma_f32 v24, v24, {sL2E}, -v27"); I(f"v_fma_f32 v19, v{vS}, {sL2E}, -v27"); I(f"v_fma_f32 v27, v{vM}, {sL2E}, -v27")
    I("v_exp_f32 v24, v24"); I("v_exp_f32 v19, v19"); I("v_exp_f32 v27, v27")
    I("v_mul_f32 v21, v24, v25")
    I(f"v_cvt_pk_bf16_f32 v{vPP}, v19, v19")
    I(f"v_mul_f32 v{vAL}, v{vAL}, v27")
    dpp("v_add_f32", 21, 21, 21, "quad_perm:[1,0,3,2]"); dpp("v_add_f32", 21, 21, 21, "quad_perm:[2,3,0,1]"); dpp("v_add_f32", 21, 21, 21, "row_half_mirror")
    I("s_mov_b64 exec, 1")
    I(f"buffer_store_dwordx4 {quad(20)}, v3, s[52:55], {sHN} offen")
    I(f"buffer_store_dwordx4 {quad(20)}, v3, s[52:55], {sJ} offen sc1")
    I("s_mov_b64 exec, -1")
    stamp(3)
    for e in range(4):
        if earlyv: consume_V(T + 4 * e, e, False, lambda: None, lambda: None, built=False)
        else: consume_V(VC + 4 * e, e, False, lambda e=e: a.wait_vm(("ep", 2 * e + 1)), lambda: None, built=False)
    stamp(4)
    I("s_mov_b32 exec_hi, 0")
    I(f"ds_write2_b32 v45, v28, v29 offset0:{PART//4} offset1:{PART//4+8}"); I(f"ds_write2_b32 v45, v30, v31 offset0:{PART//4+16} offset1:{PART//4+24}")
    I("s_mov_b32 exec_hi, -1")
    a.lg0(); I("s_barrier")
    red8(T, 43, 44)
    I(f"ds_read_b128 {quad(32)}, v46 offset:{SCR}"); I(f"ds_read_b128 {quad(36)}, v46 offset:{SCR+128}")
    ACC = 48
    if earlyv: a.wait_vm(("ep", DM - 1))
    for t in range(2):
        B = X0 if t == 0 else X1
        I(f"s_waitcnt lgkmcnt({1-t})")
        for j in range(8):
            c = "0" if t == 0 else quad(ACC + 4 * j)
            I(f"v_mfma_f32_16x16x32_bf16 {quad(ACC+4*j)}, {quad(32+4*t)}, {quad(B+4*j)}, {c}")
    for j in range(8): dpp("v_add_f32", 28 + (j & 3), ACC + 4 * j + 1, ACC + 4 * j, "row_ror:8", rm=f"0x{1 << (j>>2):x}")
    for r in range(4): I(f"v_bfi_b32 v{28+r}, v4, {sN[r]}, v{28+r}")
    I("s_mov_b64 exec, 0x00ff00ff")
    I(f"buffer_store_dwordx4 {quad(28)}, v47, s[52:55], s43 offen")
    I(f"buffer_store_dwordx4 {quad(28)}, v47, s[52:55], s42 offen sc1")
    I("s_mov_b64 exec, -1")
    stamp(5)
    I(f"s_cmp_ge_u32 s2, {NFFN}"); I("s_cbranch_scc1 L_exit")
    a.vmq = []
    WA = 48; WD = 80
    I("s_and_b32 s100, s2, 7"); I("s_mul_i32 s101, s100, 5"); I("s_min_u32 s100, s100, 3"); I("s_add_u32 s101, s101, s100")
    I("s_lshr_b32 s100, s2, 3"); I(f"s_add_u32 {sF}, s101, s100")
    I(f"s_lshl_b32 s100, {sF}, 6")
    I("s_add_u32 s56, s18, s100"); I("s_addc_u32 s57, s19, 0")
    I("s_add_u32 s60, s20, s100"); I("s_addc_u32 s61, s21, 0")
    I(f"s_sub_u32 s58, {512*2752}, s100"); I("s_mov_b32 s62, s58")
    I(f"s_lshl_b32 s100, {sF}, 15")
    I("s_add_u32 s64, s22, s100"); I("s_addc_u32 s65, s23, 0"); I("s_mov_b32 s66, 0x8000")
    I("s_mov_b32 s59, 0x20000"); I("s_mov_b32 s63, 0x20000"); I("s_mov_b32 s67, 0x20000")
    I("v_lshrrev_b32 v25, 2, v1"); I("v_lshl_add_u32 v25, v40, 6, v25")
    I("v_mul_u32_u24 v46, 2752, v25"); I("v_and_b32 v25, 3, v1"); I("v_lshl_add_u32 v46, v25, 4, v46")
    I("v_lshrrev_b32 v25, 3, v1"); I("v_lshlrev_b32 v47, 10, v25"); I("v_lshl_add_u32 v47, v40, 7, v47")
    I("v_and_b32 v25, 7, v1"); I("v_lshl_add_u32 v47, v25, 4, v47")
    I(f"s_mul_i32 {sFW}, {sW}, 12288"); I(f"s_add_u32 {sFW}, {sFW}, {FW}")
    for u in range(0 if x_noffn else 12):
        m, k = u >> 2, u & 3
        I(f"s_add_u32 m0, {sFW}, {u*1024}")
        I(f"s_mov_b32 {sOFF}, {k * 44032 if m < 2 else k * 8192}")
        I(f"buffer_load_dwordx4 {'v46' if m < 2 else 'v47'}, {['s[56:59]', 's[60:63]', 's[64:67]'][m]}, {sOFF} offen{NT} lds", tag=("ffn", u))
    I("v_lshrrev_b32 v27, 2, v42"); I("v_lshl_add_u32 v27, v41, 3, v27")
    I("v_and_b32 v26, 3, v42"); I("v_lshlrev_b32 v26, 3, v26"); I(f"v_add_u32 v26, {sFW}, v26")
    I("v_lshl_add_u32 v25, v27, 6, v26")
    I("v_lshl_add_u32 v24, v27, 7, v26")
    I("v_mov_b32 v2, v25"); I("v_mov_b32 v3, v24")
    I("v_and_b32 v27, 1, v42")
    I("v_lshlrev_b32 v26, 10, v27"); I("v_lshl_add_u32 v26, v40, 7, v26"); I("v_lshl_add_u32 v26, v41, 4, v26"); I(f"v_add_u32 v26, {LN2}, v26")
    I("v_lshlrev_b32 v25, 6, v27"); I("v_lshl_add_u32 v25, v40, 8, v25"); I("v_lshl_add_u32 v25, v41, 4, v25"); I(f"v_add_u32 v25, {SCR}, v25")
    I("v_lshrrev_b32 v24, 1, v42"); I(f"v_mov_b32 v23, {ZERO}")
    for tile in range(4):
        I(f"v_cmp_eq_u32 vcc, {tile}, v24")
        I(f"v_cndmask_b32 v{5+tile}, v23, v26, vcc"); I(f"v_cndmask_b32 v{9+tile}, v23, v25, vcc")
    I("v_bfe_u32 v23, v42, 2, 1"); I("v_lshlrev_b32 v13, 8, v23"); I("v_lshl_add_u32 v13, v27, 7, v13")
    I("v_bfe_u32 v23, v42, 1, 1"); I("v_lshl_add_u32 v13, v23, 6, v13"); I("v_lshl_add_u32 v13, v41, 4, v13"); I("v_lshl_add_u32 v13, v40, 9, v13")
    I("v_and_b32 v23, 3, v24"); I("v_lshl_add_u32 v23, v40, 2, v23"); I("v_mul_u32_u24 v14, 6144, v23")
    I("v_lshl_add_u32 v14, v27, 6, v14"); I("v_lshl_add_u32 v14, v41, 4, v14")
    I(f"s_lshl_b32 s68, {sF}, 7"); I(f"s_add_u32 s68, s68, {YIN}")
    I("v_lshlrev_b32 v15, 2, v1"); I(f"v_add_u32 v15, {PART2}, v15")
    I("v_lshlrev_b32 v16, 1, v1"); I("v_lshl_add_u32 v16, v40, 8, v16"); I(f"v_add_u32 v16, {SCR}, v16")
    a.wait_vm(("ffn", 7))
    for t in range(2):
        for tile in range(4):
            for hf in range(2):
                r = WA + 16 * t + 4 * tile + 2 * hf
                off = (tile >> 1) * 4096 + t * 2048 + hf * 256 + (tile & 1) * 32
                I(f"ds_read_b64_tr_b16 v[{r}:{r+1}], v2 offset:{off}")
    a.lg0()
    a.wait_vm_all()
    for tile in range(4):
        for hf in range(2):
            r = WD + 4 * tile + 2 * hf
            I(f"ds_read_b64_tr_b16 v[{r}:{r+1}], v3 offset:{8192 + hf*512 + tile*32}")
    if prost: stamp(6, True)
    I("v_lshlrev_b32 v17, 3, v42"); I("v_lshl_add_u32 v17, v41, 1, v17"); I("v_lshl_add_u32 v17, v40, 7, v17")
    I("global_load_ushort v36, v17, s[4:5]"); I("global_load_ushort v37, v17, s[4:5] offset:1024")
    I("v_lshlrev_b32 v21, 4, v1"); I("v_add_u32 v22, 16384, v21")
    I("s_and_b32 s69, s2, 7"); I("s_lshl_b32 s69, s69, 15"); I(f"s_lshl_b32 s100, {sW}, 11"); I("s_add_u32 s69, s69, s100"); I(f"s_add_u32 s69, s69, {P2}")
    I("v_lshlrev_b32 v38, 4, v40"); I("v_lshl_add_u32 v38, v41, 2, v38")
    I("v_and_b32 v39, 7, v1"); I("v_lshlrev_b32 v39, 4, v39")
    I(f"v_mov_b32 v34, {f32(1.0/512)}"); I(f"v_mov_b32 v35, {f32(1.0/512)}")
    I(f"v_mov_b32 v44, {f32(1e-5)}"); I(f"v_mov_b32 v45, {f32(1e-5)}")
    I(f"s_mov_b32 {sCNT}, {SPIN}")
    a.wait_vm_all()
    I("v_lshlrev_b32 v36, 16, v36"); I("v_lshlrev_b32 v37, 16, v37")
    PR = 96
    a.label("L_ppoll")
    a.vmq = []
    if psleep: I(f"s_sleep {psleep}")
    for k in range(4): I(f"buffer_load_dwordx4 {quad(PR+4*k)}, v{21 + (k >> 1)}, s[52:55], s69 offen offset:{1024*(k&1)} sc1", tag=("p", k))
    spin()
    for k in range(4):
        a.wait_vm(("p", k))
        P = PR + 4 * k
        for r in range(4):
            acc = 20 if r < 2 else 18
            if k == 0 and r in (0, 2): I(f"v_xor_b32 v{acc}, {sN[r]}, v{P+r}")
            else: I(f"v_bitop3_b32 v{acc}, v{acc}, v{P+r}, {sN[r]} bitop3:0xf6")
        I(f"v_permlane16_swap_b32 v{P}, v{P+1}"); I(f"v_permlane16_swap_b32 v{P+2}, v{P+3}")
        I(f"v_add_f32 v{P}, v{P}, v{P+1}"); I(f"v_add_f32 v{P+2}, v{P+2}, v{P+3}")
        if k == 3:
            I("v_bitop3_b32 v20, v20, v18, v4 bitop3:0xa8"); I("v_cmp_ne_u32 vcc, 0, v20")
        I(f"v_permlane32_swap_b32 v{P}, v{P+2}")
        I(f"v_add_f32 v{P}, v{P}, v{P+2}")
    I("s_cbranch_vccnz L_ppoll")
    stamp(6)
    for k in range(4): dpp("v_add_f32", 24 + (k >> 1), PR + 4 * k, PR + 4 * k, "row_ror:8", bm="0x3" if k % 2 == 0 else "0xc")
    def unp(lo, hi, src): I(f"v_lshlrev_b32 v{lo}, 16, v{src}"); I(f"v_and_b32 v{hi}, 0xffff0000, v{src}")
    I("v_cvt_pk_bf16_f32 v25, v24, v25"); unp(24, 25, 25)
    I("v_pk_add_f32 v[24:25], v[24:25], v[36:37]")
    I("v_cvt_pk_bf16_f32 v23, v24, v25"); unp(24, 25, 23)
    I("v_pk_mul_f32 v[30:31], v[24:25], v[24:25]")
    I("v_mov_b32 v28, v24"); I("v_mov_b32 v29, v25")
    I(f"ds_write_b16 v17, v23 offset:{HS}"); I(f"ds_write_b16_d16_hi v17, v23 offset:{HS+1024}")
    I("v_permlane16_swap_b32 v28, v29"); I("v_permlane16_swap_b32 v30, v31")
    I("v_add_f32 v28, v28, v29"); I("v_add_f32 v30, v30, v31")
    I("v_permlane32_swap_b32 v28, v30"); I("v_add_f32 v28, v28, v30")
    row_allreduce("v_add_f32", [28])
    I(f"ds_write_b32 v38, v28 offset:{STS}")
    a.lg0(); I("s_barrier")
    I(f"ds_read_b128 {quad(28)}, v39 offset:{STS}")
    a.lg0()
    for ctl in ["quad_perm:[1,0,3,2]", "quad_perm:[2,3,0,1]", "row_half_mirror"]:
        for r in range(4): dpp("v_add_f32", 28 + r, 28 + r, 28 + r, ctl)
    I("v_pk_mul_f32 v[28:29], v[28:29], v[34:35]")
    I("v_pk_mul_f32 v[32:33], v[28:29], v[28:29]")
    I("v_cvt_pk_bf16_f32 v29, v28, v29")
    I("v_pk_fma_f32 v[30:31], v[30:31], v[34:35], v[32:33] neg_lo:[0,0,1] neg_hi:[0,0,1]")
    unp(28, 29, 29)
    I("v_max_f32 v30, 0, v30"); I("v_max_f32 v31, 0, v31")
    I("v_pk_add_f32 v[24:25], v[24:25], v[28:29] neg_lo:[0,1] neg_hi:[0,1]")
    I("v_cvt_pk_bf16_f32 v31, v30, v31")
    I("v_cvt_pk_bf16_f32 v25, v24, v25")
    unp(30, 31, 31)
    I("v_pk_add_f32 v[30:31], v[30:31], v[44:45]")
    unp(24, 25, 25)
    I("v_cvt_pk_bf16_f32 v31, v30, v31"); unp(30, 31, 31)
    I("v_sqrt_f32 v30, v30"); I("v_sqrt_f32 v31, v31")
    I("v_cvt_pk_bf16_f32 v31, v30, v31"); unp(30, 31, 31)
    I("v_rcp_f32 v30, v30"); I("v_rcp_f32 v31, v31")
    I("v_pk_mul_f32 v[24:25], v[24:25], v[30:31]")
    I("v_cvt_pk_bf16_f32 v23, v24, v25")
    I(f"ds_write_b16 v17, v23 offset:{LN2}"); I(f"ds_write_b16_d16_hi v17, v23 offset:{LN2+1024}")
    a.lg0()
    BR = T
    def br(u): return (112 if u < 4 else 144) + 4 * (u & 3)
    for t in range(2):
        for tile in range(4): I(f"ds_read_b128 {quad(br(4*t+tile))}, v{5+tile} offset:{t*64}")
    for u in range(8):
        I(f"s_waitcnt lgkmcnt({7-u})")
        I(f"v_mfma_f32_16x16x32_bf16 {quad(28)}, {quad(WA+4*u)}, {quad(br(u))}, {'0' if u == 0 else quad(28)}")
    I("s_mov_b32 exec_lo, 0x00ff00ff"); I("s_mov_b32 exec_hi, 0x00ff00ff")
    I(f"ds_write_b128 v13, {quad(28)} offset:{PART2}")
    I("s_mov_b64 exec, -1")
    a.lg0(); I("s_barrier")
    R = BR
    for w in range(8): I(f"ds_read2st64_b32 {pair(R+2*w)}, v15 offset0:{2*w} offset1:{2*w+1}")
    sum8(R)
    I(f"v_cvt_pk_bf16_f32 v19, v{R}, v{R+1}")
    I("v_lshlrev_b32 v18, 16, v19"); I("v_and_b32 v19, 0xffff0000, v19")
    I(f"v_mul_f32 v20, {f32(-LOG2E)}, v18"); I("v_exp_f32 v20, v20"); I("v_add_f32 v20, 1.0, v20"); I("v_rcp_f32 v20, v20")
    I("v_mul_f32 v18, v18, v20")
    rbf(18, 18)
    I("v_mul_f32 v18, v18, v19")
    I("v_cvt_pk_bf16_f32 v18, v18, v18")
    I("ds_write_b16 v16, v18")
    a.lg0()
    for tile in range(4): I(f"ds_read_b128 {quad(BR+4*tile)}, v{9+tile}")
    for u in range(4):
        I(f"s_waitcnt lgkmcnt({3-u})")
        I(f"v_mfma_f32_16x16x32_bf16 {quad(28)}, {quad(WD+4*u)}, {quad(BR+4*u)}, {'0' if u == 0 else quad(28)}")
    for r in range(4): I(f"v_bfi_b32 v{28+r}, v4, {sN[r]}, v{28+r}")
    I("s_mov_b32 exec_lo, 0x00ff00ff"); I("s_mov_b32 exec_hi, 0x00ff00ff")
    I(f"buffer_store_dwordx4 {quad(28)}, v14, s[52:55], s68 offen sc1")
    I("s_mov_b64 exec, -1")
    stamp(7)
    if tst:
        I("s_waitcnt vmcnt(0)"); stamp(1)
        I(f"s_cmp_lg_u32 {sW}, 7"); I("s_cbranch_scc1 L_exit")
        a.lg0()
        I("s_lshl_b32 s100, s2, 7"); I("s_add_u32 s100, s100, 0x20000000"); I("v_mov_b32 v26, s100"); I("s_mov_b64 exec, 1")
        I("s_sleep 60")
        I("v_mov_b32 v28, s94"); I("v_mov_b32 v29, s95"); I("global_store_dwordx2 v26, v[28:29], s[28:29] offset:16")
        I("v_mov_b32 v30, s82"); I("v_mov_b32 v31, s83"); I("global_store_dwordx2 v26, v[30:31], s[28:29] offset:24")
    a.label("L_exit", pad=1)
    if stamps:
        I(f"s_cmp_lg_u32 {sW}, 0"); I("s_cbranch_scc1 L_end")
        a.lg0()
        I("s_lshl_b32 s100, s2, 7"); I("s_add_u32 s100, s100, 0x20000000"); I("v_mov_b32 v26, s100")
        I("s_mov_b64 exec, 1")
        for i in range(10):
            I(f"s_cmp_eq_u32 s{80+2*i}, 0"); I(f"s_cbranch_scc1 L_st0_{i}")
            I(f"v_mov_b32 v28, s{80+2*i}"); I(f"v_mov_b32 v29, s{81+2*i}")
            I(f"global_store_dwordx2 v26, v[28:29], s[28:29] offset:{8*i}")
            a.label(f"L_st0_{i}")
    a.label("L_end")
    I("s_endpgm")
    a.label("L_svc", pad=1)
    a.vmq = []
    I("s_setprio 3")
    I("v_lshrrev_b32 v46, 5, v1"); I("v_and_b32 v47, 31, v1")
    I("v_lshlrev_b32 v46, 10, v46")
    I("v_lshl_add_u32 v43, v47, 4, v46")
    I(f"s_lshl_b32 s100, {sJ}, 7")
    I("v_lshl_add_u32 v44, v47, 2, v46"); I("v_add_u32 v44, s100, v44")
    I("v_lshlrev_b32 v3, 13, v41"); I("v_lshl_add_u32 v3, v42, 4, v3")
    I(f"s_lshl_b32 s101, {sH}, 8"); I(f"s_lshl_b32 {sOFF}, {sJ}, 19"); I(f"s_add_u32 s101, s101, {sOFF}")
    I("s_sub_u32 s42, 0x400000, s101"); I("s_mov_b32 s43, 0x20000")
    I(f"s_lshl_b32 {sCNT}, {sH}, 3"); I(f"v_mov_b32 v37, {sCNT}"); I("v_mov_b32 v39, 0")
    I(f"ds_write_b32 v39, v39 offset:{QFLAG}")
    a.lg0()
    XS = 144; XC = 152
    I(f"global_load_dwordx4 {quad(XS)}, v43, s[4:5]", tag="XS0")
    I("s_add_u32 s40, s10, s101"); I("s_addc_u32 s41, s11, 0")
    I(f"global_load_dwordx4 {quad(XS+4)}, v43, s[4:5] offset:512", tag="XS1")
    I("s_or_b32 s70, s70, 1"); I("v_mov_b32 v38, s70")
    I(f"global_load_dword v{XC}, v44, s[4:5]", tag="XC")
    for u in range(16):
        I(f"s_mov_b32 m0, {FW + 1024*u}")
        if u: I(f"s_mov_b32 {sOFF}, {u*0x8000}")
        I(f"buffer_load_dwordx4 v3, s[40:43], {sOFF if u else 0} offen{NT} lds", tag=("wq", u))
    I("s_mov_b64 exec, 1")
    I("global_atomic_cmpswap v36, v37, v[38:39], s[26:27] sc0 sc1", tag="cas")
    I("s_mov_b64 exec, -1")
    I("s_barrier")
    I("s_mov_b32 s101, 0x3f803f80")
    I(f"v_mov_b32 v27, {f32(1.0/512)}")
    I("s_mov_b32 s52, s28"); I("s_mov_b32 s53, s29"); I(f"s_mov_b32 s54, {WSZ}"); I("s_mov_b32 s55, 0x20000")
    I("v_lshlrev_b32 v44, 2, v1")
    I(f"ds_write_b32 v44, v39 offset:{ZERO}")
    I("v_and_b32 v45, 1, v1"); I("v_lshlrev_b32 v46, 7, v45"); I("v_lshl_add_u32 v46, v41, 4, v46"); I(f"v_add_u32 v46, {SCR8}, v46")
    I("v_lshrrev_b32 v25, 1, v42"); I(f"v_mov_b32 v24, {ZERO}")
    for tile in range(8):
        I(f"v_cmp_eq_u32 vcc, {tile}, v25"); I(f"v_cndmask_b32 v{5+tile}, v24, v46, vcc")
    I("v_lshrrev_b32 v47, 2, v42"); I("v_lshl_add_u32 v47, v41, 3, v47"); I("v_lshlrev_b32 v47, 8, v47")
    I("v_and_b32 v43, 3, v42"); I("v_lshl_add_u32 v47, v43, 3, v47")
    I("v_lshlrev_b32 v4, 13, v45"); I("v_lshl_add_u32 v4, v25, 7, v4"); I("v_lshl_add_u32 v4, v41, 5, v4")
    I("v_lshlrev_b32 v45, 4, v1"); I("v_add_u32 v43, 4096, v45")
    I(f"s_lshl_b32 s100, {sH}, 14"); I(f"s_lshl_b32 s68, {sJ}, 10"); I("s_add_u32 s68, s68, s100"); I(f"s_add_u32 s68, s68, {QIA}")
    I(f"s_lshl_b32 s69, {sB}, 13"); I("s_add_u32 s69, s69, s100"); I(f"s_add_u32 s69, s69, {QIA}")
    a.wait_vm("XS1")
    ln_sums([XS + k for k in range(8)], 18, 19, "s101")
    a.wait_vm("XC")
    ln_unpack(154, [XC])
    half_allreduce([18, 19], [20, 21])
    ln_stats(18, 19, 20, 22, 26)
    ln_apply(XC, 154, 1, 20, 22)
    I(f"ds_write_b32 v44, v{XC} offset:{SCR8}")
    a.lg0()
    AW, BW = 48, 80
    for t in range(2):
        for tile in range(8): I(f"ds_read_b128 {quad(BW+32*t+4*tile)}, v{5+tile} offset:{t*64}")
        if t == 0: a.lg0()
    for t in range(2):
        a.wait_vm(("wq", 8 * t + 7))
        for half8 in range(2):
            for tile in range(4 * half8, 4 * half8 + 4):
                for hf in range(2): I(f"ds_read_b64_tr_b16 {pair(AW+4*tile+2*hf)}, v47 offset:{FW + t*8192 + hf*1024 + tile*32}")
            if half8 == 0: a.lg0()
        a.lg0()
        for tile in range(8):
            I(f"v_mfma_f32_16x16x32_bf16 {quad(28)}, {quad(AW+4*tile)}, {quad(BW+32*t+4*tile)}, {'0' if t == 0 and tile == 0 else quad(28)}")
    a.wait_vm("cas")
    I("v_readfirstlane_b32 s100, v36")
    I("s_cmp_eq_u32 s100, 0"); I(f"s_cselect_b32 {sHN}, s70, s100")
    I(f"v_mov_b32 v34, {sHN}"); I(f"v_mov_b32 v35, {sHN}")
    I("v_mov_b32 v32, v30"); I("v_mov_b32 v33, v31")
    I("v_mov_b32 v30, v34"); I("v_mov_b32 v31, v34")
    if prost: stamp(7, True)
    I(f"buffer_store_dwordx4 {quad(28)}, v4, s[52:55], s68 offen")
    I(f"buffer_store_dwordx4 {quad(32)}, v4, s[52:55], s68 offen offset:16")
    I(f"s_sub_u32 s68, s68, {QIA-QIN}")
    I(f"s_mov_b32 {sCNT}, {SPIN}")
    I("s_mov_b32 s100, s69")
    QR = 48
    a.label("L_qpoll")
    a.vmq = []
    for k in range(8): I(f"buffer_load_dwordx4 {quad(QR+4*k)}, v{45 if k < 4 else 43}, s[52:55], s100 offen offset:{1024*(k&3)} sc1", tag=("q", k))
    I(f"s_cmp_lg_u32 {sCNT}, {SPIN}"); I("s_cbranch_scc1 L_qnost")
    I(f"buffer_store_dwordx4 {quad(28)}, v4, s[52:55], s68 offen sc1", count=False)
    I(f"buffer_store_dwordx4 {quad(32)}, v4, s[52:55], s68 offen offset:16 sc1", count=False)
    I("s_waitcnt vmcnt(2)"); I("s_branch L_qchk")
    a.label("L_qnost")
    I("s_waitcnt vmcnt(0)")
    a.label("L_qchk")
    spin()
    I(f"s_and_b32 s100, {sCNT}, 3"); I("s_cmp_eq_u32 s100, 1"); I(f"s_cselect_b32 s100, {QIA-QIN}, 0"); I("s_sub_u32 s100, s69, s100")
    I(f"v_xor_b32 v20, {sHN}, v{QR+2}"); I(f"v_xor_b32 v21, {sHN}, v{QR+3}")
    for k in range(1, 8):
        I(f"v_bitop3_b32 v20, v20, v{QR+4*k+2}, {sHN} bitop3:0xf6"); I(f"v_bitop3_b32 v21, v21, v{QR+4*k+3}, {sHN} bitop3:0xf6")
    I("v_or_b32 v20, v20, v21")
    I("v_cmp_ne_u32 vcc, 0, v20")
    I("s_cbranch_vccnz L_qpoll")
    for k in (0, 2, 4, 6): I(f"v_pk_add_f32 {pair(QR+4*k)}, {pair(QR+4*k)}, {pair(QR+4*k+4)}")
    for k in (0, 4): I(f"v_pk_add_f32 {pair(QR+4*k)}, {pair(QR+4*k)}, {pair(QR+4*k+8)}")
    I(f"v_pk_add_f32 {pair(QR)}, {pair(QR)}, {pair(QR+16)}")
    I(f"v_cvt_pk_bf16_f32 v{QR}, v{QR}, v{QR+1}")
    I(f"ds_write_b32 v44, v{QR} offset:{QRDY}")
    I("v_mov_b32 v38, 1")
    I(f"ds_write_b32 v39, v38 offset:{QFLAG}")
    if prost: stamp(8, True)
    I("s_setprio 0")
    I(f"s_mov_b32 {sL2E}, {f32(LOG2E)}")
    I("v_mov_b32 v4, 0xff")
    I("s_sub_u32 s100, s2, 32"); I("s_cmp_lt_u32 s100, 96"); I("s_cbranch_scc1 L_exit8")
    I(f"s_mov_b32 {sCNT}, {SPIN}")
    a.label("L_gn8")
    I("global_load_dword v9, v39, s[26:27] sc1", count=False)
    spin()
    I("s_waitcnt vmcnt(0)")
    I(f"v_readfirstlane_b32 {sN[0]}, v9")
    I(f"s_cmp_eq_u32 {sN[0]}, 0"); I("s_cbranch_scc1 L_gn8")
    for r in range(1, 4): I(f"s_lshr_b32 {sN[r]}, {sN[0]}, {8*r}")
    I(f"s_mov_b32 {sCNT}, {SPIN}")
    I("v_lshlrev_b32 v21, 4, v1"); I("v_add_u32 v19, 4096, v21")

    def poll2(name, issue, nl, use):
        a.vmq = []
        issue(0)
        if stag: I(f"s_sleep {stag}")
        a.label(f"L_{name}")
        for st in range(2):
            issue(1 - st)
            use(st)
            I(f"s_cbranch_vccz L_{name}_ok")
        spin()
        I(f"s_branch L_{name}")
        a.label(f"L_{name}_ok", pad=2)

    I("s_cmp_lt_u32 s2, 32"); I("s_cbranch_scc1 L_fin8")
    I("s_and_b32 s100, s2, 7"); I("s_bfe_u32 s101, s2, 0x40003")
    I("s_lshl_b32 s69, s100, 4"); I("s_add_u32 s69, s69, s101"); I("s_lshl_b32 s69, s69, 12"); I(f"s_add_u32 s69, s69, {ZIN+ALT}")
    I("s_lshl_b32 s68, s101, 11"); I("s_lshl_b32 s42, s100, 7"); I("s_add_u32 s68, s68, s42"); I(f"s_add_u32 s68, s68, {P2}")
    I("s_lshr_b32 s101, s101, 3"); I("s_lshl_b32 s100, s100, 1"); I("s_add_u32 s100, s100, s101"); I("s_lshl_b32 s43, s100, 8"); I(f"s_add_u32 s43, s43, {MLA+ALT}")
    I("v_lshrrev_b32 v23, 3, v1"); I("v_lshlrev_b32 v22, 15, v23"); I("v_and_b32 v27, 7, v1"); I("v_lshl_add_u32 v22, v27, 4, v22")
    I("v_lshlrev_b32 v23, 5, v23")
    for _ in range(2 + bar1 + len(sync)): I("s_barrier")
    M = 48; Z = 56
    def altsel(dst, base):
        I(f"s_and_b32 s42, {sCNT}, {alt_every-1}"); I("s_cmp_eq_u32 s42, 0"); I(f"s_cselect_b32 s42, {ALT}, 0")
        I(f"s_sub_u32 {dst}, {base}, s42")
    I("s_mov_b32 s100, s43"); I("s_mov_b32 s101, s69")
    a.label("L_mlpoll")
    a.vmq = []
    for k in range(2): I(f"buffer_load_dwordx4 {quad(M+4*k)}, v23, s[52:55], s100 offen offset:{16*k} sc1", tag=("ml", k))
    spin()
    altsel("s100", "s43")
    a.wait_vm(("ml", 1))
    I(f"v_xor_b32 v14, {sN[0]}, v{M+2}")
    for r in (3, 6, 7): I(f"v_bitop3_b32 v14, v14, v{M+r}, {sN[0]} bitop3:0xf6")
    I("v_cmp_ne_u32 vcc, 0, v14")
    I("s_cbranch_vccnz L_mlpoll")
    def zl():
        for k in range(4): I(f"buffer_load_dwordx4 {quad(Z+4*k)}, v21, s[52:55], s101 offen offset:{1024*k} sc1", tag=("z", k))
    zl()
    I(f"v_max_f32 v20, v{M}, v{M+4}")
    dpp("v_max_f32", 20, 20, 20, "row_ror:8")
    I(f"v_mul_f32 v20, {sL2E}, v20")
    I(f"v_fma_f32 v24, v{M}, {sL2E}, -v20"); I(f"v_fma_f32 v26, v{M+4}, {sL2E}, -v20")
    I("v_exp_f32 v24, v24"); I("v_exp_f32 v26, v26")
    I(f"v_mul_f32 v20, v24, v{M+1}"); I(f"v_fmac_f32 v20, v26, v{M+5}")
    dpp("v_add_f32", 20, 20, 20, "row_ror:8")
    I("v_rcp_f32 v20, v20")
    I("v_mul_f32 v24, v24, v20"); I("v_mul_f32 v26, v26, v20")
    I("v_mov_b32 v25, v24"); I("v_mov_b32 v27, v26")
    I("s_branch L_zchk")
    a.label("L_zpoll")
    a.vmq = []
    zl()
    a.label("L_zchk")
    spin()
    altsel("s101", "s69")
    for k in range(4):
        a.wait_vm(("z", k))
        for r in range(4):
            acc = 20 if r < 2 else 18
            if k == 0 and r in (0, 2): I(f"v_xor_b32 v{acc}, {sN[r]}, v{Z+r}")
            else: I(f"v_bitop3_b32 v{acc}, v{acc}, v{Z+4*k+r}, {sN[r]} bitop3:0xf6")
        A_ = 28 + 4 * (k >> 1)
        for r in (0, 2):
            if k % 2 == 0: I(f"v_pk_mul_f32 {pair(A_+r)}, v[24:25], {pair(Z+4*k+r)}")
            else: I(f"v_pk_fma_f32 {pair(A_+r)}, v[26:27], {pair(Z+4*k+r)}, {pair(A_+r)}")
    I("v_bitop3_b32 v20, v20, v18, v4 bitop3:0xa8")
    for A_ in (28, 32): I(f"v_permlane16_swap_b32 v{A_}, v{A_+1}"); I(f"v_permlane16_swap_b32 v{A_+2}, v{A_+3}")
    I("v_cmp_ne_u32 vcc, 0, v20")
    for A_ in (28, 32): I(f"v_add_f32 v{A_}, v{A_}, v{A_+1}"); I(f"v_add_f32 v{A_+2}, v{A_+2}, v{A_+3}")
    I("s_cbranch_vccnz L_zpoll")
    if not prost: stamp(7)
    for A_ in (28, 32): I(f"v_permlane32_swap_b32 v{A_}, v{A_+2}")
    for A_ in (28, 32): I(f"v_add_f32 v{A_}, v{A_}, v{A_+2}")
    for A_ in (28, 32): dpp("v_add_f32", A_, A_, A_, "row_ror:8")
    for A_ in (28, 32): I(f"v_mov_b32 v{A_+1}, v{A_}")
    for A_ in (28, 32): I(f"v_permlane16_swap_b32 v{A_}, v{A_+1}")
    for A_ in (28, 32): I(f"v_mov_b32 v{A_+2}, v{A_}"); I(f"v_mov_b32 v{A_+3}, v{A_+1}")
    for A_ in (28, 32):
        I(f"v_permlane32_swap_b32 v{A_}, v{A_+2}"); I(f"v_permlane32_swap_b32 v{A_+1}, v{A_+3}")
    for A_ in (28, 32):
        for r in range(4): I(f"v_bfi_b32 v{A_+r}, v4, {sN[r]}, v{A_+r}")
        I(f"buffer_store_dwordx4 {quad(A_)}, v22, s[52:55], s68 offen offset:{(A_-28)*256} sc1")
    I("s_branch L_exit8")
    a.label("L_fin8", pad=1)
    WR = 136; L2R = 128
    I("v_lshrrev_b32 v27, 5, v1"); I("v_and_b32 v26, 31, v1"); I("v_lshlrev_b32 v26, 4, v26")
    I("v_lshl_add_u32 v17, v27, 10, v26")
    for k in range(2): I(f"global_load_dwordx4 {quad(WR+4*k)}, v26, s[16:17] offset:{512*k}")
    I("s_mul_i32 s100, s2, 6144"); I(f"s_add_u32 s100, s100, {YIN}")
    I("s_add_u32 s44, s28, s100"); I("s_addc_u32 s45, s29, 0"); I(f"s_mov_b32 s46, {NFFN*128}"); I("s_mov_b32 s47, 0x20000")
    I("v_bfe_u32 v16, v1, 2, 1")
    I("v_and_b32 v15, 3, v1"); I("v_lshlrev_b32 v15, 3, v15"); I("v_lshl_add_u32 v15, v41, 1, v15"); I("v_lshl_add_u32 v15, v16, 10, v15")
    I("s_lshl_b32 s100, s2, 5"); I("v_add_u32 v15, s100, v15")
    YR = [48, 80]
    def y_issue(st):
        for k in range(6): I(f"buffer_load_dwordx4 {quad(YR[st]+4*k)}, v{21 if k < 4 else 19}, s[44:47], 0 offen offset:{1024*(k&3)} sc1", tag=("y", st, k))
    a.wait_vm_all()
    for _ in range(2 + bar1 + len(sync)): I("s_barrier")
    I("s_barrier"); I("s_barrier")
    I(f"ds_read_b128 {quad(L2R)}, v17 offset:{LN2}"); I(f"ds_read_b128 {quad(L2R+4)}, v17 offset:{LN2+512}")
    I(f"ds_read_u16 v24, v15 offset:{LN2}"); I(f"ds_read_u16 v25, v15 offset:{HS}")
    a.lg0()
    I(f"v_dot2_f32_bf16 v14, v{L2R}, v{WR}, 0")
    for k in range(1, 8): I(f"v_dot2_f32_bf16 v14, v{L2R+k}, v{WR+k}, v14")
    half_allreduce([14], [20])
    rbf(14, 14)
    I(f"v_mul_f32 v20, {f32(-LOG2E)}, v14"); I("v_exp_f32 v20, v20"); I("v_add_f32 v20, 1.0, v20"); I("v_rcp_f32 v20, v20")
    rbf(20, 20)
    I("v_readlane_b32 s100, v20, 0"); I("v_readlane_b32 s101, v20, 32")
    I("v_cmp_eq_u32 vcc, 1, v16"); I("v_mov_b32 v14, s100"); I("v_mov_b32 v20, s101"); I("v_cndmask_b32 v14, v14, v20, vcc")
    I("v_lshlrev_b32 v24, 16, v24"); I("v_lshlrev_b32 v25, 16, v25")
    I(f"s_mov_b32 {sCNT}, {SPIN}")
    def y_use(st):
        Y = YR[st]
        for k in range(6):
            a.wait_vm(("y", st, k))
            if k == 5: I("s_mov_b64 exec, 0xffffff")
            for r in range(4):
                acc = 20 if r < 2 else 18
                if k == 0 and r in (0, 2): I(f"v_xor_b32 v{acc}, {sN[r]}, v{Y+r}")
                else: I(f"v_bitop3_b32 v{acc}, v{acc}, v{Y+4*k+r}, {sN[r]} bitop3:0xf6")
            if k == 5: I("s_mov_b64 exec, -1")
            if k == 1:
                for r in (0, 2): I(f"v_pk_add_f32 {pair(28+r)}, {pair(Y+r)}, {pair(Y+4+r)}")
            elif k > 1:
                for r in (0, 2): I(f"v_pk_add_f32 {pair(28+r)}, {pair(28+r)}, {pair(Y+4*k+r)}")
        I("v_bitop3_b32 v20, v20, v18, v4 bitop3:0xa8")
        I("v_permlane16_swap_b32 v28, v29"); I("v_permlane16_swap_b32 v30, v31")
        I("v_add_f32 v28, v28, v29"); I("v_add_f32 v30, v30, v31")
        I("v_cmp_ne_u32 vcc, 0, v20")
    if ydelay: I(f"s_sleep {ydelay}")
    poll2("yp", y_issue, 6, y_use)
    stamp(8)
    I("v_permlane32_swap_b32 v28, v30"); I("v_add_f32 v28, v28, v30")
    dpp("v_add_f32", 28, 28, 28, "row_ror:8")
    rbf(28, 28)
    I("v_mul_f32 v28, v28, v14"); rbf(28, 28)
    I("v_add_f32 v28, v28, v24"); rbf(28, 28)
    I("v_add_f32 v28, v28, v25")
    I("v_cvt_pk_bf16_f32 v28, v28, v28")
    I("s_mov_b32 exec_lo, 0x00ff00ff"); I("s_mov_b32 exec_hi, 0x00ff00ff")
    I("global_store_short v15, v28, s[24:25]")
    I("s_mov_b64 exec, -1")
    if stamps:
        I("s_waitcnt vmcnt(0)")
        stamp(9)
    a.label("L_exit8", pad=1)
    a.lg0()
    if stamps:
        I("s_lshl_b32 s100, s2, 7"); I("s_add_u32 s100, s100, 0x20000000"); I("v_mov_b32 v26, s100")
        I("s_mov_b64 exec, 1")
        for i in range(6, 10):
            I(f"s_cmp_eq_u32 s{80+2*i}, 0"); I(f"s_cbranch_scc1 L_st8_{i}")
            I(f"v_mov_b32 v28, s{80+2*i}"); I(f"v_mov_b32 v29, s{81+2*i}")
            I(f"global_store_dwordx2 v26, v[28:29], s[28:29] offset:{8*i}")
            a.label(f"L_st8_{i}")
    I("s_endpgm")

    a.label("L_codeend")
    a.raw('.section .rodata,"a"'); a.raw(".p2align 6"); a.raw(f".amdhsa_kernel {NAME}_kernel")
    for l in ["next_free_vgpr 168", "next_free_sgpr 102", "accum_offset 168", "group_segment_fixed_size 0", "kernarg_size 104",
              "user_sgpr_count 2", "user_sgpr_kernarg_segment_ptr 1", "system_sgpr_workgroup_id_x 1", "float_denorm_mode_32 3"]:
        a.raw("  .amdhsa_" + l)
    a.raw(".end_amdhsa_kernel")
    return a.text()

if __name__ == "__main__":
    import argparse
    ap = argparse.ArgumentParser()
    ap.add_argument("out"); ap.add_argument("--kw", default="")
    x = ap.parse_args()
    kw = eval("dict(" + x.kw + ")")
    open(x.out, "w").write(gen(**kw))
```
